```python
import torch

def _softmax(x, axis=-1):
    return torch.softmax(x, dim=axis)
def _gelu(x):
    return torch.nn.functional.gelu(x, approximate="tanh")
def _silu(x):
    return torch.nn.functional.silu(x)
def _sigmoid(x):
    return torch.sigmoid(x)
def _layernorm(x, axis=-1, eps=1e-5):
    m = x.mean(dim=axis, keepdim=True)
    v = x.var(dim=axis, keepdim=True, unbiased=False)
    return (x - m) / torch.sqrt(v + eps)
def _scatter_add(tgt, idx, src, axis=0):
    return tgt.clone().index_add_(axis, idx, src)
def _segment_sum(src, seg, n):
    out = torch.zeros((n,) + src.shape[1:], dtype=src.dtype)
    return out.index_add_(0, seg, src)
def _pad(x, pw):
    flat = tuple(v for pair in reversed(pw) for v in pair)
    return torch.nn.functional.pad(x, flat)

kernel_name = 'concat_heads__gqa_block_cached__gqa_block_cached__near_ridge'

def setup_inputs():

    _w = (lambda a: (lambda t: t.to(torch.bfloat16) if t.is_floating_point() else t)(torch.as_tensor(a)))
    def _A_setup():
        B, Sq, D = 8, 256, 640
        Hq, Hkv, Sk, Dh = 32, 32, 1024, 192
        assert Hq % Hkv == 0, (Hq, Hkv)
        return {
            "x": _w((lambda *s: torch.randn(*s, dtype=torch.bfloat16) * 0.8)(B, Sq, D)),
            "k_cache": _w((lambda *s: torch.randn(*s, dtype=torch.bfloat16) * 0.8)(B, Hkv, Sk, Dh)),
            "v_cache": _w((lambda *s: torch.randn(*s, dtype=torch.bfloat16) * 0.05)(B, Hkv, Sk, Dh)),
            "wq": _w((lambda *s: torch.randn(*s, dtype=torch.bfloat16) * 0.8)(D, Hq * Dh) * (D ** -0.5)),
            "wo": _w((lambda *s: torch.randn(*s, dtype=torch.bfloat16) * 0.05)(Hq * Dh, D) * ((Hq * Dh) ** -0.5)),
        }
    _A_in = _A_setup()

    def _B_setup():
        B, Sq, D = 8, 256, 640
        Hq, Hkv, Sk, Dh = 32, 32, 1024, 192
        assert Hq % Hkv == 0, (Hq, Hkv)
        return {
            "x": _w((lambda *s: torch.randn(*s, dtype=torch.bfloat16) * 0.8)(B, Sq, D)),
            "k_cache": _w((lambda *s: torch.randn(*s, dtype=torch.bfloat16) * 0.8)(B, Hkv, Sk, Dh)),
            "v_cache": _w((lambda *s: torch.randn(*s, dtype=torch.bfloat16) * 0.05)(B, Hkv, Sk, Dh)),
            "wq": _w((lambda *s: torch.randn(*s, dtype=torch.bfloat16) * 0.8)(D, Hq * Dh) * (D ** -0.5)),
            "wo": _w((lambda *s: torch.randn(*s, dtype=torch.bfloat16) * 0.05)(Hq * Dh, D) * ((Hq * Dh) ** -0.5)),
        }
    _B_in = _B_setup()

    return {
        "A_x": _A_in["x"],
        "A_k_cache": _A_in["k_cache"],
        "A_v_cache": _A_in["v_cache"],
        "A_wq": _A_in["wq"],
        "A_wo": _A_in["wo"],
        "B_x": _B_in["x"],
        "B_k_cache": _B_in["k_cache"],
        "B_v_cache": _B_in["v_cache"],
        "B_wq": _B_in["wq"],
        "B_wo": _B_in["wo"],
    }

def reference(A_x, A_k_cache, A_v_cache, A_wq, A_wo, B_x, B_k_cache, B_v_cache, B_wq, B_wo):
    def _A_ref(x, k_cache, v_cache, wq, wo):
        B, Sq, D = x.shape
        Hq, Dh = 32, 192
        Hkv = k_cache.shape[1]
        rep = Hq // Hkv
        q = (lambda x, *d: x.permute(*d))((x @ wq).reshape(B, Sq, Hq, Dh), 0, 2, 1, 3)
        k = (lambda x, n, axis: torch.repeat_interleave(x, n, dim=axis))(k_cache, rep, axis=1)
        v = (lambda x, n, axis: torch.repeat_interleave(x, n, dim=axis))(v_cache, rep, axis=1)
        scores = torch.einsum("bhqd,bhkd->bhqk", q, k) * (Dh ** -0.5)
        p = _softmax(scores, axis=-1)
        o = torch.einsum("bhqk,bhkd->bhqd", p, v)
        return (lambda x, *d: x.permute(*d))(o, 0, 2, 1, 3).reshape(B, Sq, Hq * Dh) @ wo

    def _B_ref(x, k_cache, v_cache, wq, wo):
        B, Sq, D = x.shape
        Hq, Dh = 32, 192
        Hkv = k_cache.shape[1]
        rep = Hq // Hkv
        q = (lambda x, *d: x.permute(*d))((x @ wq).reshape(B, Sq, Hq, Dh), 0, 2, 1, 3)
        k = (lambda x, n, axis: torch.repeat_interleave(x, n, dim=axis))(k_cache, rep, axis=1)
        v = (lambda x, n, axis: torch.repeat_interleave(x, n, dim=axis))(v_cache, rep, axis=1)
        scores = torch.einsum("bhqd,bhkd->bhqk", q, k) * (Dh ** -0.5)
        p = _softmax(scores, axis=-1)
        o = torch.einsum("bhqk,bhkd->bhqd", p, v)
        return (lambda x, *d: x.permute(*d))(o, 0, 2, 1, 3).reshape(B, Sq, Hq * Dh) @ wo

    a = _A_ref(A_x, A_k_cache, A_v_cache, A_wq, A_wo)
    b = _B_ref(B_x, B_k_cache, B_v_cache, B_wq, B_wo)
    return torch.concatenate([a, b], axis=-1)
```

```python
import re

class Asm:
    def __init__(self):
        self.lines = []
        self.lg = []
        self.vm = []
    def raw(self, s):
        self.lines.append(s)
    def e(self, s):
        self.lines.append("  " + s)
    def label(self, l):
        self.lines.append(l + ":")
    def c(self, s):
        self.lines.append("  ; " + s)
    def ds(self, s, tag):
        self.e(s); self.lg.append(tag)
    def lg_need(self, tag):
        idx = [i for i, t in enumerate(self.lg) if t == tag]
        if not idx: return None
        return len(self.lg) - 1 - idx[-1]
    def wait_lg(self, tag):
        n = self.lg_need(tag)
        if n is None: return False
        assert n <= 15, n
        self.e(f"s_waitcnt lgkmcnt({n})")
        self.lg = self.lg[len(self.lg) - n:] if n else []
        return True
    def wait_lg_all(self):
        self.e("s_waitcnt lgkmcnt(0)"); self.lg = []
    def vmem(self, s, tag):
        self.e(s); self.vm.append(tag)
    def vm_need(self, tags):
        if not isinstance(tags, (list, tuple, set)): tags = [tags]
        idx = [i for i, t in enumerate(self.vm) if t in tags]
        if not idx: return None
        return len(self.vm) - 1 - idx[-1]
    def wait_vm(self, tags):
        n = self.vm_need(tags)
        if n is None: return False
        assert n <= 63, n
        self.e(f"s_waitcnt vmcnt({n})")
        self.vm = self.vm[len(self.vm) - n:] if n else []
        return True
    def wait_vm_all(self):
        self.e("s_waitcnt vmcnt(0)"); self.vm = []
    def text(self):
        return "\n".join(self.lines) + "\n"

def vr(b, n=1):
    return f"v{b}" if n == 1 else f"v[{b}:{b+n-1}]"
def ar(b, n=1):
    return f"a{b}" if n == 1 else f"a[{b}:{b+n-1}]"
def sr(b, n=1):
    return f"s{b}" if n == 1 else f"s[{b}:{b+n-1}]"

_REG = re.compile(r"\b([va])(?:(\d+)|\[(\d+):(\d+)\])")
TRANS = ("v_exp_f32", "v_log_f32", "v_rcp_f32", "v_rsq_f32", "v_sqrt_f32", "v_sin_f32", "v_cos_f32")

def _regs(tok):
    out = set()
    for m in _REG.finditer(tok):
        k = m.group(1)
        if m.group(2) is not None:
            out.add((k, int(m.group(2))))
        else:
            for i in range(int(m.group(3)), int(m.group(4)) + 1): out.add((k, i))
    return out

def _split(ins):
    ins = ins.split(";")[0].strip()
    if not ins: return None
    parts = ins.split(None, 1)
    mn = parts[0]
    ops = []
    if len(parts) > 1:
        depth = 0; cur = ""
        for ch in parts[1]:
            if ch == "[": depth += 1
            if ch == "]": depth -= 1
            if ch == "," and depth == 0:
                ops.append(cur.strip()); cur = ""
            else: cur += ch
        ops.append(cur.strip())
    return mn, ops

class I:
    pass

def decode(ins):
    sp = _split(ins)
    if sp is None: return None
    mn, ops = sp
    i = I(); i.text = ins.strip(); i.mn = mn
    i.wr = set(); i.rd = set(); i.kind = "other"; i.ws = 1
    i.srcC = set(); i.srcAB = set()
    if mn == "s_nop":
        i.ws = int(ops[0], 0) + 1
    elif mn.startswith("v_mfma"):
        i.kind = "mfma"; i.wr = _regs(ops[0]); i.srcAB = _regs(ops[1]) | _regs(ops[2]); i.srcC = _regs(ops[3])
        i.rd = i.srcAB | i.srcC
        i.passes = 8 if "32x32x16" in mn else 4
    elif mn.startswith("v_permlane"):
        i.kind = "perm"; i.wr = _regs(ops[0]) | _regs(ops[1]); i.rd = set(i.wr)
    elif mn.startswith("v_cmp"):
        i.kind = "valu"; i.rd = set().union(*[_regs(o) for o in ops[1:]])
    elif mn in ("v_readfirstlane_b32", "v_readlane_b32"):
        i.kind = "rdlane"; i.rd = _regs(ops[1])
    elif mn.startswith("v_"):
        i.kind = "trans" if mn.replace("_e32", "").replace("_e64", "") in TRANS else "valu"
        i.wr = _regs(ops[0]); i.rd = set().union(*[_regs(o) for o in ops[1:]]) if len(ops) > 1 else set()
        if mn.startswith("v_fmac") or mn.startswith("v_pk_fmac"): i.rd |= i.wr
    elif mn.startswith("ds_read") :
        i.kind = "mem"; i.wr = _regs(ops[0]); i.rd = _regs(ops[1].split()[0])
    elif mn.startswith("ds_write"):
        i.kind = "mem"; i.rd = set().union(*[_regs(o.split()[0]) for o in ops])
    elif mn.startswith("buffer_load") or mn.startswith("global_load"):
        i.kind = "mem"
        if " lds" in ins.split(";")[0] or "_lds_" in mn:
            i.rd = _regs(ops[0])
        else:
            i.wr = _regs(ops[0]); i.rd = _regs(ops[1])
    elif mn.startswith("buffer_store") or mn.startswith("global_store"):
        i.kind = "store"; i.rd = _regs(ops[0]) | _regs(ops[1])
        i.data = _regs(ops[0]) if mn.startswith("buffer") else _regs(ops[1])
        i.wide = ("x4" in mn or "x3" in mn)
    return i

def check_linear(instrs, what=""):
    dec = [d for d in (decode(x) for x in instrs if not x.rstrip().endswith(":") and not x.strip().startswith(".") and not x.strip().startswith(";")) if d]
    probs = []
    pos = []; p = 0
    for d in dec:
        pos.append(p); p += d.ws
    for k, d in enumerate(dec):
        j = k - 1
        while j >= 0:
            pr = dec[j]
            dist = pos[k] - pos[j] - pr.ws
            if dist >= 24: break
            def bad(need, why):
                if dist < need:
                    probs.append(f"{what}: {why}: need {need} have {dist}: [{pr.text}] -> [{d.text}]")
            if pr.kind == "mfma":
                n = 12 if pr.passes == 8 else 8
                if d.kind == "mfma":
                    if pr.wr & d.srcAB: bad(n, "mfma D->A/B")
                    if pr.wr & d.srcC and pr.wr != d.srcC: bad(n - 2, "mfma D->C overlap")
                    if pr.wr & d.wr and not (pr.wr == d.srcC == d.wr) and not (pr.wr & d.srcC): bad(n, "mfma D->D WAW (conservative)")
                elif d.kind in ("valu", "trans", "perm", "rdlane", "mem", "store"):
                    if pr.wr & (d.rd | d.wr): bad(n, "mfma D->use")
                    if d.kind in ("valu", "trans", "perm") and (pr.srcC & d.wr): bad(7 if pr.passes == 8 else 3, "mfma C WAR")
            if pr.kind in ("valu", "trans", "perm"):
                if d.kind == "mfma" and (pr.wr & d.rd): bad(2, "valu->mfma")
                if d.kind == "perm" and (pr.wr & d.rd): bad(2, "valu->permlane")
                if d.kind == "rdlane" and (pr.wr & d.rd): bad(1, "valu->readlane")
                if pr.kind == "trans" and d.kind in ("valu", "perm") and (pr.wr & d.rd): bad(1, "trans->valu")
            if pr.kind == "store" and pr.wide and d.kind in ("valu", "trans", "perm") and (pr.data & d.wr): bad(2, "store data WAR")
            j -= 1
    return probs
```

```python
from asmlib import *
import math, struct

def f32bits(x):
    return struct.unpack("<I", struct.pack("<f", x))[0]

S_X, S_WQ, S_K, S_V, S_WS = 8, 12, 16, 20, 24
S_PTR = 28
S_WAVE, S_W3072, S_ROUND, S_B, S_H, S_C = 54, 55, 56, 57, 58, 59
S_KOFF, S_VOFF, S_PA, S_PB, S_PC, S_CNT, S_FLAG, S_SITE = 60, 61, 62, 63, 64, 65, 66, 67
S_T0, S_T1, S_XOFF, S_WQOFF, S_WSOFF, S_T2, S_T3 = 68, 69, 70, 71, 72, 73, 74
S_XM0 = 75
V_XD = 16
V_WD = 24
V_XA = 28
V_WA = 32
V_M, V_NEGM, V_THR, V_L, V_AL, V_MX = 36, 38, 40, 42, 44, 46
V_TMP = 48
V_KB, V_VB = 56, 60
V_KA, V_VA = 64, 68
V_KD = 72
V_L16 = 75
V_P = 80
V_S = 96
V_Q = 160
A_O = 0
A_F = 192
RING = 12
PAGE = 12288
CSC = (192 ** -0.5) * math.log2(math.e)
THR_T = 8.0

class K1:
    def __init__(self, a, opt):
        self.a = a
        self.opt = opt
        self.fc = 0
        self.rare = []
        self.paths = {}

    def setup(self):
        a = self.a
        a.e("s_cmp_ge_u32 s2, 256")
        a.e("s_cbranch_scc1 K1_END")
        a.e(f"s_load_dwordx16 s[28:43], s[0:1], 0")
        a.e(f"s_load_dwordx8 s[44:51], s[0:1], 64")
        a.e(f"s_load_dwordx2 s[52:53], s[0:1], 96")
        a.e("v_and_b32 v1, 63, v0")
        a.e("v_lshrrev_b32 v2, 6, v0")
        a.e("v_and_b32 v3, 31, v1")
        a.e(f"v_readfirstlane_b32 s{S_WAVE}, v2")
        a.e("v_lshrrev_b32 v4, 5, v1")
        a.e("v_bfe_u32 v5, v3, 1, 1")
        a.e("v_lshlrev_b32 v5, 2, v5")
        a.e("v_bfe_u32 v6, v3, 2, 2")
        a.e("v_or_b32 v5, v5, v6")
        a.e(f"s_mul_i32 s{S_W3072}, s{S_WAVE}, 3072")
        a.e(f"s_mov_b32 s{S_C}, 0x{f32bits(CSC):08x}")
        a.e(f"v_lshlrev_b32 v{V_L16}, 4, v1")
        a.e("v_mul_u32_u24 v7, 384, v3")
        a.e(f"v_subrev_u32 v7, s{S_W3072}, v7")
        for i in range(4):
            a.e(f"v_add_u32 v8, {2*i}, v4")
            a.e("v_xor_b32 v8, v8, v5")
            a.e(f"v_lshl_add_u32 v{V_KB+i}, v8, 4, v7")
        a.e(f"s_lshl_b32 s{S_T0}, s{S_WAVE}, 13")
        a.e(f"s_add_u32 s{S_XM0}, s{S_T0}, 98304")
        a.e("v_lshlrev_b32 v7, 7, v3")
        a.e(f"v_add_u32 v7, s{S_XM0}, v7")
        for i in range(4):
            a.e(f"v_add_u32 v8, {2*i}, v4")
            a.e("v_xor_b32 v8, v8, v5")
            a.e(f"v_lshl_add_u32 v{V_XA+i}, v8, 4, v7")
        a.e("v_bfe_u32 v9, v1, 2, 2")
        a.e("v_bfe_u32 v10, v1, 4, 1")
        a.e("v_and_b32 v11, 1, v1")
        a.e("v_lshl_or_b32 v10, v10, 1, v11")
        a.e("v_bfe_u32 v11, v1, 1, 1")
        a.e("v_lshlrev_b32 v11, 3, v11")
        a.e("v_lshrrev_b32 v12, 1, v9")
        a.e("v_lshlrev_b32 v12, 2, v12")
        for dtb in range(2):
            for i in range(2):
                a.e(f"v_lshl_add_u32 v13, v4, 2, v9")
                a.e(f"v_add_u32 v13, {8*i}, v13")
                a.e("v_mul_u32_u24 v13, 384, v13")
                a.e(f"v_or_b32 v14, {2*i}, v12")
                a.e("v_or_b32 v14, v14, v4")
                a.e(f"v_add_u32 v15, {4*dtb}, v10")
                a.e("v_xor_b32 v14, v14, v15")
                a.e("v_lshl_add_u32 v13, v14, 4, v13")
                a.e("v_add_u32 v13, v13, v11")
                a.e(f"v_subrev_u32 v{V_VB+2*dtb+i}, s{S_W3072}, v13")
                a.e(f"v_lshl_add_u32 v13, v4, 3, v9")
                a.e(f"v_add_u32 v13, {4*i}, v13")
                a.e("v_mul_u32_u24 v13, 384, v13")
                a.e(f"v_lshl_or_b32 v14, v4, 1, v12")
                a.e(f"v_or_b32 v14, {i}, v14")
                a.e("v_xor_b32 v14, v14, v15")
                a.e("v_lshl_add_u32 v13, v14, 4, v13")
                a.e("v_add_u32 v13, v13, v11")
                a.e(f"v_add_u32 v{V_WA+2*dtb+i}, {3*PAGE}, v13")
        a.e(f"s_mul_i32 s{S_T0}, s{S_WAVE}, 192")
        for i in range(3):
            a.e(f"v_add_u32 v7, s{S_T0}, v1")
            if i: a.e(f"v_add_u32 v7, {64*i}, v7")
            a.e("v_mul_u32_u24 v8, 2731, v7")
            a.e("v_lshrrev_b32 v8, 16, v8")
            a.e("v_bfe_u32 v13, v8, 1, 1")
            a.e("v_lshlrev_b32 v13, 2, v13")
            a.e("v_bfe_u32 v14, v8, 2, 2")
            a.e("v_or_b32 v13, v13, v14")
            a.e("v_lshlrev_b32 v13, 4, v13")
            a.e("v_lshlrev_b32 v14, 4, v7")
            a.e("v_xor_b32 v14, v14, v13")
            a.e(f"v_subrev_u32 v{V_KD+i}, {1024*i}, v14")
            a.e("v_mul_u32_u24 v15, 11904, v8")
            a.e(f"v_add_u32 v{V_WD+i}, v15, v{V_KD+i}")
        a.e(f"s_mul_i32 s{S_T0}, s{S_WAVE}, {64*1280}")
        for i in range(8):
            a.e("v_lshrrev_b32 v7, 3, v1")
            a.e(f"v_add_u32 v7, {8*i}, v7")
            a.e("v_bfe_u32 v13, v7, 1, 1")
            a.e("v_lshlrev_b32 v13, 2, v13")
            a.e("v_bfe_u32 v14, v7, 2, 2")
            a.e("v_or_b32 v13, v13, v14")
            a.e("v_and_b32 v14, 7, v1")
            a.e("v_xor_b32 v13, v13, v14")
            a.e("v_mul_u32_u24 v7, 1280, v7")
            a.e("v_lshl_add_u32 v7, v13, 4, v7")
            a.e(f"v_add_u32 v7, s{S_T0}, v7")
            a.e(f"v_subrev_u32 v{V_XD+i}, {1024*(i&3)}, v7")
        a.e("s_waitcnt lgkmcnt(0)")
        a.e(f"s_mov_b32 s{S_WS}, s52")
        a.e(f"s_mov_b32 s{S_WS+1}, s53")
        a.e(f"s_mov_b32 s{S_WS+2}, {439353344}")
        a.e(f"s_mov_b32 s{S_WS+3}, 0x00020000")
        a.e(f"s_and_b32 s{S_T0}, s2, 1")
        a.e(f"s_lshl_b32 s{S_T0}, s{S_T0}, 2")
        a.e(f"s_bfe_u32 s{S_T1}, s2, 0x20003")
        a.e(f"s_or_b32 s{S_B}, s{S_T0}, s{S_T1}")
        a.e(f"s_bfe_u32 s{S_T0}, s2, 0x20001")
        a.e(f"s_lshl_b32 s{S_T0}, s{S_T0}, 3")
        a.e(f"s_lshr_b32 s{S_T1}, s2, 5")
        a.e(f"s_or_b32 s{S_H}, s{S_T0}, s{S_T1}")
        a.e(f"s_mov_b32 s{S_ROUND}, 0")

    def item_setup(self):
        a = self.a
        a.e(f"s_cmp_eq_u32 s{S_ROUND}, 0")
        a.e(f"s_cselect_b32 s{S_X}, s28, s38")
        a.e(f"s_cselect_b32 s{S_X+1}, s29, s39")
        a.e(f"s_mov_b32 s{S_X+2}, {8*256*640*2}")
        a.e(f"s_mov_b32 s{S_X+3}, 0x00020000")
        a.e(f"s_cselect_b32 s{S_WQ}, s34, s44")
        a.e(f"s_cselect_b32 s{S_WQ+1}, s35, s45")
        a.e(f"s_mov_b32 s{S_WQ+2}, {640*6144*2}")
        a.e(f"s_mov_b32 s{S_WQ+3}, 0x00020000")
        a.e(f"s_cselect_b32 s{S_K}, s30, s40")
        a.e(f"s_cselect_b32 s{S_K+1}, s31, s41")
        a.e(f"s_cselect_b32 s{S_V}, s32, s42")
        a.e(f"s_cselect_b32 s{S_V+1}, s33, s43")
        a.e(f"s_lshl_b32 s{S_T0}, s{S_B}, 5")
        a.e(f"s_add_u32 s{S_T0}, s{S_T0}, s{S_H}")
        a.e(f"s_mul_i32 s{S_T0}, s{S_T0}, 393216")
        a.e(f"s_add_u32 s{S_K}, s{S_K}, s{S_T0}")
        a.e(f"s_addc_u32 s{S_K+1}, s{S_K+1}, 0")
        a.e(f"s_add_u32 s{S_V}, s{S_V}, s{S_T0}")
        a.e(f"s_addc_u32 s{S_V+1}, s{S_V+1}, 0")
        a.e(f"s_mov_b32 s{S_K+2}, 393216")
        a.e(f"s_mov_b32 s{S_K+3}, 0x00020000")
        a.e(f"s_mov_b32 s{S_V+2}, 393216")
        a.e(f"s_mov_b32 s{S_V+3}, 0x00020000")
        a.e(f"s_mul_i32 s{S_XOFF}, s{S_B}, 327680")
        a.e(f"s_mul_i32 s{S_WQOFF}, s{S_H}, 384")
        a.e(f"s_mul_i32 s{S_WSOFF}, s{S_ROUND}, 25165824")
        a.e(f"s_lshl_b32 s{S_T0}, s{S_B}, 3")
        a.e(f"s_lshl_b32 s{S_T1}, s{S_WAVE}, 1")
        a.e(f"s_add_u32 s{S_T0}, s{S_T0}, s{S_T1}")
        a.e(f"s_mul_i32 s{S_T0}, s{S_T0}, 393216")
        a.e(f"s_add_u32 s{S_WSOFF}, s{S_WSOFF}, s{S_T0}")
        a.e(f"s_mul_i32 s{S_T0}, s{S_H}, 12288")
        a.e(f"s_add_u32 s{S_WSOFF}, s{S_WSOFF}, s{S_T0}")
        a.e(f"s_add_u32 s{S_PA}, s{S_W3072}, 98304")
        a.e(f"s_mov_b32 s{S_PB}, s{S_W3072}")
        a.e(f"s_add_u32 s{S_PC}, s{S_W3072}, 49152")
        a.e(f"s_mov_b32 s{S_FLAG}, 0")
        for i in range(4):
            a.e(f"v_add_u32 v{V_KA+i}, s{S_PB}, v{V_KB+i}")
            a.e(f"v_add_u32 v{V_VA+i}, s{S_PB}, v{V_VB+i}")

    def nt(self):
        return " nt" if self.opt.get("nt", 1) else ""

    def dma_kv_static(self, which, tile):
        a = self.a
        srd = S_K if which == "K" else S_V
        page = 2 * (tile % 6) + (0 if which == "K" else 1)
        a.e(f"s_add_u32 m0, s{S_W3072}, {page*PAGE}")
        a.e(f"s_mov_b32 s{S_T2}, {tile*PAGE}")
        for i in range(3):
            a.vmem(f"buffer_load_dwordx4 v{V_KD+i}, s[{srd}:{srd+3}], s{S_T2} offen offset:{1024*i}{self.nt()} lds", (which, tile))

    def dma_wq(self, u):
        a = self.a
        a.e(f"s_add_u32 m0, s{S_W3072}, {(3 + u % 5)*PAGE}")
        a.e(f"s_add_u32 s{S_T2}, s{S_WQOFF}, {u*32*12288}")
        for i in range(3):
            a.vmem(f"buffer_load_dwordx4 v{V_WD+i}, s[{S_WQ}:{S_WQ+3}], s{S_T2} offen offset:{1024*i} lds", ("W", u))

    def dma_x(self, c):
        a = self.a
        for hlf in range(2):
            a.e(f"s_add_u32 m0, s{S_XM0}, {(c&1)*32768 + hlf*4096}")
            a.e(f"s_add_u32 s{S_T3}, s{S_XOFF}, {c*128}")
            for i in range(4):
                a.vmem(f"buffer_load_dwordx4 v{V_XD+4*hlf+i}, s[{S_X}:{S_X+3}], s{S_T3} offen offset:{1024*i} lds", ("X", c))

    def xreg(self, c, t, s):
        return V_S + (c & 1) * 32 + t * 16 + s * 4

    def x_read(self, c, n):
        t, s = n >> 2, n & 3
        self.a.ds(f"ds_read_b128 {vr(self.xreg(c,t,s),4)}, v{V_XA+s} offset:{(c&1)*32768 + t*4096}", ("xr", c))

    def slot(self, n):
        return A_F + 4 * (n % RING)

    def phase_q(self):
        a = self.a
        D = self.opt.get("DQ", 5)
        a.c("---- phase Q")
        self.dma_x(0); self.dma_wq(0); self.dma_wq(1); self.dma_x(1); self.dma_wq(2); self.dma_wq(3)
        if not self.opt.get("no_kv"):
            self.dma_kv_static("K", 0); self.dma_kv_static("K", 1); self.dma_kv_static("V", 0)
        a.wait_vm([("X", 0), ("W", 0)])
        a.e("s_barrier")
        for n in range(8): self.x_read(0, n)
        base = self.fc
        def wread(g, i):
            u, r = divmod(g, 12); s, dt = divmod(r, 6)
            off = (u % 5) * PAGE + s * 6144 + (dt >> 1) * 128
            a.ds(f"ds_read_b64_tr_b16 {ar(self.slot(base+g)+2*i,2)}, v{V_WA+2*(dt&1)+i} offset:{off}", ("wf", g))
        for g in range(D):
            wread(g, 0); wread(g, 1)
        NG = 240
        for g in range(NG):
            u, r = divmod(g, 12); s, dt = divmod(r, 6)
            c = u >> 1; sidx = 2 * (u & 1) + s
            if r == 0 and (u & 1) == 0:
                a.wait_lg(("xr", c))
            a.wait_lg(("wf", g))
            for t in range(2):
                acc = ar(A_O + (t * 6 + dt) * 16, 16)
                cin = "0" if (u == 0 and s == 0) else acc
                a.e(f"v_mfma_f32_32x32x16_bf16 {acc}, {ar(self.slot(base+g),4)}, {vr(self.xreg(c,t,sidx),4)}, {cin}")
                if g + D < NG: wread(g + D, t)
            if r == 12 - D - 1:
                if u + 1 < 20:
                    a.wait_vm([("W", u + 1)])
                    a.e("s_barrier")
                    if u + 4 < 20: self.dma_wq(u + 4)
            if (u & 1) == 1 and c + 1 < 10:
                if r == 1: a.wait_vm([("X", c + 1)])
                if 1 <= r <= 8: self.x_read(c + 1, r - 1)
            if (u & 1) == 0 and r == 0 and c >= 1 and c + 1 < 10:
                pass
            if (u & 1) == 0 and r == 1 and c + 2 < 10:
                self.dma_x(c + 2)
        self.fc = base + NG
        a.e("s_barrier")

    def q_convert(self):
        a = self.a
        a.e("s_nop 15")
        for t in range(2):
            for ks in range(12):
                dt, hlf = ks >> 1, ks & 1
                for m in range(8):
                    a.e(f"v_accvgpr_read_b32 v{V_TMP+m}, a{A_O+(t*6+dt)*16+8*hlf+m}")
                for m in range(4):
                    a.e(f"v_cvt_pk_bf16_f32 v{V_Q+t*48+ks*4+m}, v{V_TMP+2*m}, v{V_TMP+2*m+1}")

    def S(self, p, t, e): return V_S + p * 32 + t * 16 + e

    def q_max(self, p, t, site, first=False):
        o = []
        mx = f"v{V_MX+t}"
        s = lambda e: f"v{self.S(p,t,e)}"
        o.append((4, f"v_max3_f32 {mx}, {s(0)}, {s(1)}, {s(2)}"))
        for e in range(3, 15, 2):
            o.append((4, f"v_max3_f32 {mx}, {mx}, {s(e)}, {s(e+1)}"))
        o.append((4, f"v_max_f32 {mx}, {mx}, {s(15)}"))
        if first:
            tmp = f"v{V_TMP+t}"
            o.append((4, f"v_mov_b32 {tmp}, {mx}"))
            o.append((8, "s_nop 1"))
            o.append((4, f"v_permlane32_swap_b32 {mx}, {tmp}"))
            o.append((4, f"v_max_f32 v{V_M+t}, {mx}, {tmp}"))
            o.append((4, f"v_mul_f32 v{V_NEGM+t}, s{S_C}, v{V_M+t}"))
            o.append((4, f"v_sub_f32 v{V_NEGM+t}, 0, v{V_NEGM+t}"))
            o.append((4, f"v_add_f32 v{V_THR+t}, 0x{f32bits(THR_T/CSC):08x}, v{V_M+t}"))
            o.append((4, f"v_mov_b32 v{V_L+t}, 0"))
            o.append((4, f"v_mov_b32 v{V_AL+t}, 1.0"))
        else:
            lab = f"RARE_{site}_{t}"; ret = f"RET_{site}_{t}"
            o.append((4, f"v_cmp_gt_f32 vcc, {mx}, v{V_THR+t}"))
            o.append((4, f"s_cbranch_vccnz {lab}\n{ret}:"))
            self.rare.append((lab, t, ret))
        return o

    def fma(self, p, t, e):
        return (4, f"v_fma_f32 v{self.S(p,t,e)}, v{self.S(p,t,e)}, s{S_C}, v{V_NEGM+t}")
    def exp(self, p, t, e):
        return (8, f"v_exp_f32 v{self.S(p,t,e)}, v{self.S(p,t,e)}")
    def add(self, p, t, e):
        return (4, f"v_add_f32 v{V_L+t}, v{V_L+t}, v{self.S(p,t,e)}")
    def cvt(self, p, t, m):
        return (4, f"v_cvt_pk_bf16_f32 v{V_P+t*8+m}, v{self.S(p,t,2*m)}, v{self.S(p,t,2*m+1)}")

    @staticmethod
    def inter(x, y, ny=1):
        o = []; y = list(y)
        for it in x:
            o.append(it)
            for _ in range(ny):
                if y: o.append(y.pop(0))
        return o + y

    def QB(self, p, site, first=False):
        o = self.q_max(p, 0, site, first) + self.q_max(p, 1, site, first)
        o += [self.fma(p, 0, e) for e in range(8)]
        o += self.inter([self.exp(p, 0, e) for e in range(8)], [self.fma(p, 1, e) for e in range(8)])
        o += self.inter([self.exp(p, 1, e) for e in range(8)], [self.fma(p, 0, e) for e in range(8, 16)])
        o += [self.fma(p, 1, e) for e in range(8, 16)]
        return o

    def QA(self, p):
        c1 = [self.cvt(p, 0, m) for m in range(4)] + [self.cvt(p, 1, m) for m in range(4)]
        a1 = [self.add(p, 0, e) for e in range(8)] + [self.add(p, 1, e) for e in range(8)]
        o = self.inter([self.exp(p, 0, e) for e in range(8, 16)], c1 + a1[:4], 2)
        o += self.inter([self.exp(p, 1, e) for e in range(8, 16)], a1[4:] + [self.cvt(p, 0, m) for m in range(4, 8)], 2)
        o += [self.add(p, 0, e) for e in range(8, 16)]
        o += [self.cvt(p, 1, m) for m in range(4, 8)]
        o += [self.add(p, 1, e) for e in range(8, 16)]
        return o

    def k_read(self, n, ks, kc):
        self.a.ds(f"ds_read_b128 {ar(self.slot(n),4)}, v{V_KA+(ks&3)} offset:{kc + (ks>>2)*128}", ("f", n))
    def v_read(self, n, idx, vc, i):
        ks2, dt = divmod(idx, 6)
        self.a.ds(f"ds_read_b64_tr_b16 {ar(self.slot(n)+2*i,2)}, v{V_VA+2*(dt&1)+i} offset:{vc + PAGE + ks2*6144 + (dt>>1)*128}", ("f", n))

    def iteration(self, odd, site, do_qk=True, do_pv=True, first=False, czero=False, last=False, dma=True):
        a = self.a
        self._it0 = len(a.lines)
        D = self.opt.get("D", 5)
        G = self.opt.get("G", 1)
        BUD = self.opt.get("BUD", 24)
        cur = 1 if odd else 0; nxt = 1 - cur
        kc = 0 if odd else 24576
        kc_next = 24576 if odd else 0
        vc = 24576 if odd else 0
        base = self.fc
        nk = 12 if do_qk else 0
        nv = 12 if do_pv else 0
        def reads_for(step):
            n = base + step
            if step < nk: return [lambda: self.k_read(n, step, kc)]
            if step < nk + nv:
                return [lambda: self.v_read(n, step - nk, vc, 0), lambda: self.v_read(n, step - nk, vc, 1)]
            if last: return []
            return [lambda: self.k_read(n, step - nk - nv, kc_next)]
        qa = [] if first else self.QA(cur)
        qb = [] if last else self.QB(nxt, site, first)
        def dma_group(which):
            o = []
            if which == "K":
                m0 = f"s_add_u32 m0, s{S_PA}, 24576" if odd else f"s_mov_b32 m0, s{S_PB}"
                srd, so = S_K, S_KOFF
            else:
                m0 = f"s_add_u32 m0, s{S_PC}, 36864" if odd else f"s_add_u32 m0, s{S_PA}, 12288"
                srd, so = S_V, S_VOFF
            o.append((4, m0)); o.append((4, "s_nop 0"))
            for i in range(3):
                o.append((self.opt.get("DMAC", 16), ("VM", f"buffer_load_dwordx4 v{V_KD+i}, s[{srd}:{srd+3}], s{so} offen offset:{1024*i}{self.nt()} lds", which)))
            o.append((4, f"s_add_u32 s{so}, s{so}, {PAGE}"))
            return o
        def emit(it):
            if isinstance(it, tuple): a.vmem(it[1], it[2])
            else: a.e(it)
        pinA = {}; pinB = {}
        if dma and not self.opt.get('nodma'):
            pinA[1] = dma_group("K"); pinA[6] = dma_group("V")
        if not odd and not last:
            pinA.setdefault(0, []); pinA[0] = [(4, f"v_add_u32 v{V_VA+i}, s{S_PB}, v{V_VB+i}") for i in range(4)] + pinA[0]
            pinB[0] = [(4, f"v_add_u32 v{V_KA+i}, s{S_PC}, v{V_KB+i}") for i in range(4)]
        BAR = 12 - D - 2
        a.c(f"---- iter site {site} phase A")
        def run_phase(steps, mk, queue, pins, qmin, off):
            carry = 0
            for st in range(steps):
                gs = off + st
                if a.wait_lg(("f", base + min(gs + (G - 1 - (gs % G)), nk + nv - 1))): carry -= 4
                rd = reads_for(gs + D) if (do_pv or gs + D < nk) else []
                for t in range(2):
                    a.e(mk(st, t))
                    carry += BUD
                    if t < len(rd): rd[t](); carry -= 4
                    if t == 0 and st in pins:
                        for cst, it in pins[st]:
                            if it == "BARRIER":
                                a.e(f"s_waitcnt vmcnt({self.opt.get('VMN',18)})" if not first else "s_waitcnt vmcnt(15)")
                                a.e("s_barrier")
                            else: emit(it)
                            carry -= cst
                    while queue and 2 * st + t >= qmin and carry >= queue[0][0]:
                        cst, it = queue.pop(0); emit(it); carry -= cst
                    if carry > 8: carry = 8
            while queue:
                cst, it = queue.pop(0); emit(it)
        def mk_qk(st, t):
            acc = vr(self.S(nxt, t, 0), 16)
            return f"v_mfma_f32_32x32x16_bf16 {acc}, {ar(self.slot(base+st),4)}, {vr(V_Q+t*48+st*4,4)}, {'0' if st == 0 else acc}"
        def mk_pv(st, t):
            ks2, dt = divmod(st, 6)
            acc = ar(A_O + (t * 6 + dt) * 16, 16)
            return f"v_mfma_f32_32x32x16_bf16 {acc}, {ar(self.slot(base+nk+st),4)}, {vr(V_P+t*8+ks2*4,4)}, {'0' if (czero and ks2 == 0) else acc}"
        if do_qk:
            run_phase(12, mk_qk, qa, pinA, 0, 0)
        else:
            for st in range(D):
                for r in reads_for(st): r()
            for cst, it in qa: emit(it)
            a.e("s_nop 1")
        a.c(f"---- iter site {site} phase B")
        if do_pv:
            if not last:
                pinB.setdefault(BAR, []); pinB[BAR] = pinB[BAR] + [(8, "BARRIER")]
            run_phase(12, mk_pv, qb, pinB, self.opt.get("QMIN", 4), nk)
            if not last:
                a.e(f"s_cmp_lg_u32 s{S_FLAG}, 0")
                a.e(f"s_mov_b32 s{S_SITE}, {site}")
                a.e(f"s_cbranch_scc1 RESCALE")
                a.label(f"RESC_RET_{site}")
        else:
            a.e("s_nop 7"); a.e("s_nop 3")
            a.wait_vm(["K1V0"])
            a.e("s_barrier")
            for st in range(nk, nk + D):
                for r in reads_for(st): r()
            for cst, it in qb: emit(it)
        self.fc = base + nk + nv
        if self.opt.get("nocomp") and not first:
            keep = []
            for l in a.lines[self._it0:]:
                t = l.strip()
                if t.startswith("v_mfma") or t.startswith("ds_read") or t.startswith("v_exp") or t.startswith("v_fma") or t.startswith("v_max") or t.startswith("v_add_f32") or t.startswith("v_cvt") or t.startswith("s_waitcnt lgkm"):
                    continue
                keep.append(l)
            a.lines[self._it0:] = keep
        if self.opt.get("novalu") and not first:
            keep = []
            for l in a.lines[self._it0:]:
                t = l.strip()
                if t.startswith("v_exp") or t.startswith("v_fma") or t.startswith("v_max") or t.startswith("v_add_f32") or t.startswith("v_cvt"):
                    continue
                keep.append(l)
            a.lines[self._it0:] = keep

    def stamp(self, i):
        if not self.opt.get("stamp"): return
        a = self.a
        a.e("s_memrealtime s[76:77]" if self.opt.get("stamp") == 1 else "s_memtime s[76:77]")
        a.e("s_waitcnt lgkmcnt(0)"); a.lg = []
        a.e(f"s_cmp_eq_u32 s{S_ROUND}, 0")
        a.e(f"s_cselect_b32 s{80+i}, s76, s{80+i}")
        a.e(f"s_cselect_b32 s{88+i}, s{88+i}, s76")

    def stamp_store(self):
        if not self.opt.get("stamp"): return
        a = self.a
        a.e(f"s_lshl_b32 s{S_T0}, s2, 8")
        a.e(f"s_lshl_b32 s{S_T1}, s{S_WAVE}, 6")
        a.e(f"s_add_u32 s{S_T0}, s{S_T0}, s{S_T1}")
        a.e(f"s_add_u32 s{S_T0}, s{S_T0}, {64<<20}")
        a.e("v_mov_b32 v1, 0")
        for i in range(16):
            a.e(f"v_mov_b32 v2, s{80+i}")
            a.e(f"buffer_store_dword v2, v1, s[{S_WS}:{S_WS+3}], s{S_T0} offen offset:{4*i}")
            a.e("s_waitcnt vmcnt(0)")

    def rotate(self):
        a = self.a
        a.e(f"s_mov_b32 s{S_T0}, s{S_PA}")
        a.e(f"s_mov_b32 s{S_PA}, s{S_PB}")
        a.e(f"s_mov_b32 s{S_PB}, s{S_PC}")
        a.e(f"s_mov_b32 s{S_PC}, s{S_T0}")

    def epilogue(self):
        a = self.a
        a.c("---- epilogue")
        for t in range(2):
            a.e(f"v_mov_b32 v{V_TMP+t}, v{V_L+t}")
        a.e("s_nop 1")
        for t in range(2):
            a.e(f"v_permlane32_swap_b32 v{V_L+t}, v{V_TMP+t}")
        for t in range(2):
            a.e(f"v_add_f32 v{V_L+t}, v{V_L+t}, v{V_TMP+t}")
        for t in range(2):
            a.e(f"v_rcp_f32 v{V_L+t}, v{V_L+t}")
        a.e("s_nop 7")
        k = 0
        for t in range(2):
            for ks in range(12):
                dt, hlf = ks >> 1, ks & 1
                tb = V_S + (k % 4) * 16; k += 1
                for m in range(8):
                    a.e(f"v_accvgpr_read_b32 v{tb+m}, a{A_O+(t*6+dt)*16+8*hlf+m}")
                for m in range(8):
                    a.e(f"v_mul_f32 v{tb+m}, v{tb+m}, v{V_L+t}")
                for m in range(4):
                    a.e(f"v_cvt_pk_bf16_f32 v{tb+8+m}, v{tb+2*m}, v{tb+2*m+1}")
                if ks % 4 == 0:
                    a.e(f"s_add_u32 s{S_T2}, s{S_WSOFF}, {t*393216 + (ks>>2)*4096}")
                a.vmem(f"buffer_store_dwordx4 {vr(tb+8,4)}, v{V_L16}, s[{S_WS}:{S_WS+3}], s{S_T2} offen offset:{(ks&3)*1024}", "ST")

    def rare_blocks(self, sites):
        a = self.a
        for lab, t, ret in self.rare:
            a.label(lab)
            mx = f"v{V_MX+t}"; tmp = f"v{V_TMP+t}"
            a.e(f"v_mov_b32 {tmp}, {mx}")
            a.e("s_nop 1")
            a.e(f"v_permlane32_swap_b32 {mx}, {tmp}")
            a.e(f"v_max3_f32 {mx}, {mx}, {tmp}, v{V_M+t}")
            a.e(f"v_sub_f32 {tmp}, v{V_M+t}, {mx}")
            a.e(f"v_mul_f32 {tmp}, s{S_C}, {tmp}")
            a.e(f"v_exp_f32 v{V_AL+t}, {tmp}")
            a.e(f"v_mov_b32 v{V_M+t}, {mx}")
            a.e(f"v_mul_f32 v{V_NEGM+t}, s{S_C}, {mx}")
            a.e(f"v_sub_f32 v{V_NEGM+t}, 0, v{V_NEGM+t}")
            a.e(f"v_add_f32 v{V_THR+t}, 0x{f32bits(THR_T/CSC):08x}, {mx}")
            a.e(f"s_mov_b32 s{S_FLAG}, 1")
            a.e(f"s_branch {ret}")
        a.label("RESCALE")
        a.e("s_nop 15")
        for t in range(2):
            a.e(f"v_mul_f32 v{V_L+t}, v{V_L+t}, v{V_AL+t}")
            for r0 in range(0, 96, 8):
                for m in range(8): a.e(f"v_accvgpr_read_b32 v{V_TMP+m}, a{A_O+t*96+r0+m}")
                for m in range(8): a.e(f"v_mul_f32 v{V_TMP+m}, v{V_TMP+m}, v{V_AL+t}")
                for m in range(8): a.e(f"v_accvgpr_write_b32 a{A_O+t*96+r0+m}, v{V_TMP+m}")
            a.e(f"v_mov_b32 v{V_AL+t}, 1.0")
        a.e(f"s_mov_b32 s{S_FLAG}, 0")
        a.e("s_nop 1")
        for s in sites[:-1]:
            a.e(f"s_cmp_eq_u32 s{S_SITE}, {s}")
            a.e(f"s_cbranch_scc1 RESC_RET_{s}")
        a.e(f"s_branch RESC_RET_{sites[-1]}")

    def dump_q(self):
        a = self.a
        for t in range(2):
            for ks in range(12):
                if ks % 4 == 0:
                    a.e(f"s_add_u32 s{S_T2}, s{S_WSOFF}, {t*393216 + (ks>>2)*4096}")
                a.vmem(f"buffer_store_dwordx4 {vr(V_Q+t*48+ks*4,4)}, v{V_L16}, s[{S_WS}:{S_WS+3}], s{S_T2} offen offset:{(ks&3)*1024}", "ST")

    def build(self, name):
        a = self.a
        a.raw(f".globl {name}\n.p2align 8\n.type {name},@function")
        a.label(name)
        self.setup()
        a.label("K1_ITEM")
        i0 = len(a.lines)
        self.stamp(0)
        self.item_setup()
        self.phase_q()
        self.stamp(1)
        if self.opt.get("dump_q"):
            self.q_convert(); self.dump_q(); a.wait_vm_all()
        else:
            for w, tl in (("K", 2), ("K", 3), ("V", 1), ("K", 4), ("V", 2)):
                self.dma_kv_static(w, tl)
            a.vm = ["K1V0" if t in (("K", 0), ("K", 1), ("V", 0)) else t for t in a.vm]
            a.e(f"s_mov_b32 s{S_KOFF}, {5*PAGE}")
            a.e(f"s_mov_b32 s{S_VOFF}, {3*PAGE}")
            while self.fc % RING: self.fc += 1
            D = self.opt.get("D", 5)
            for st in range(D): self.k_read(self.fc + st, st, 0)
            self.q_convert()
            self.iteration(True, 9, do_pv=False, first=True)
            while self.fc % RING: raise Exception("ring misaligned")
            self.iteration(False, 0, czero=True)
            self.rotate()
            self.stamp(2)
            a.e(f"s_mov_b32 s{S_CNT}, 15")
            a.raw(".p2align 3")
            a.label("K1_LOOP")
            l0 = len(a.lines)
            self.iteration(True, 1)
            self.iteration(False, 2)
            self.rotate()
            a.e(f"s_sub_u32 s{S_CNT}, s{S_CNT}, 1")
            a.e(f"s_cmp_lg_u32 s{S_CNT}, 0")
            a.e("s_cbranch_scc1 K1_LOOP")
            l1 = len(a.lines)
            self.iteration(True, 3, do_qk=False, last=True, dma=False)
            a.e("s_nop 15")
            self.stamp(3)
            self.epilogue()
            self.paths["loop2"] = a.lines[i0:l1] + a.lines[l0:]
        a.e("s_waitcnt vmcnt(0) lgkmcnt(0)"); a.vm = []; a.lg = []
        self.stamp(4)
        a.e("s_barrier")
        a.e(f"s_add_u32 s{S_ROUND}, s{S_ROUND}, 1")
        a.e(f"s_cmp_lt_u32 s{S_ROUND}, 2")
        a.e("s_cbranch_scc1 K1_ITEM")
        self.stamp_store()
        a.label("K1_END")
        a.e("s_endpgm")
        if not self.opt.get("dump_q"):
            self.rare_blocks([0, 1, 2])

KD = """.amdhsa_kernel {name}
  .amdhsa_next_free_vgpr {vgpr}
  .amdhsa_next_free_sgpr {sgpr}
  .amdhsa_accum_offset {acc}
  .amdhsa_group_segment_fixed_size 0
  .amdhsa_kernarg_size 104
  .amdhsa_user_sgpr_count 2
  .amdhsa_user_sgpr_kernarg_segment_ptr 1
  .amdhsa_system_sgpr_workgroup_id_x 1
.end_amdhsa_kernel
"""
```

```python
from asmlib import *
import gen_k1

S_WO, S_O0, S_O1, S_WS, S_OUT, S_DBG = 8, 12, 16, 20, 24, 28
S_WAVE, S_BLK, S_KQ, S_QB, S_NT, S_T0, S_T1, S_T2 = 54, 55, 56, 57, 58, 59, 60, 61
S_DOFF, S_OOFF, S_M0A, S_M0B, S_CNT, S_XW, S_XR, S_OUTOFF, S_CTR, S_SPIN = 62, 63, 64, 65, 66, 67, 68, 69, 70, 71
V_L16 = 8
V_WD = 10
V_WA = 16
V_OUT = 20
V_OF = 64
V_T = 128
A_ACC = 0
A_F = 160
RING = 10
UNIT = 20480
XBASE = 64 << 20

class K2:
    def __init__(self, a, opt):
        self.a = a; self.opt = opt; self.paths = {}
        self.launch = "; @launch kernel=oproj_kernel grid=(256,1,1) block=(256,1,1) lds=81920"
        self.kd = gen_k1.KD.format(name="oproj_kernel", vgpr=512, sgpr=96, acc=256)

    def slot(self, n): return A_F + 4 * (n % RING)
    def oreg(self, ks, t): return V_OF + (ks % 8) * 8 + t * 4

    def setup(self):
        a = self.a
        a.e("s_cmp_ge_u32 s2, 256")
        a.e("s_cbranch_scc1 K2_END")
        a.e("s_load_dwordx2 s[32:33], s[0:1], 32")
        a.e("s_load_dwordx2 s[34:35], s[0:1], 72")
        a.e("s_load_dwordx4 s[36:39], s[0:1], 80")
        a.e("s_load_dwordx2 s[40:41], s[0:1], 96")
        a.e("v_and_b32 v1, 63, v0")
        a.e("v_lshrrev_b32 v2, 6, v0")
        a.e(f"v_lshlrev_b32 v{V_L16}, 4, v1")
        a.e(f"v_readfirstlane_b32 s{S_WAVE}, v2")
        a.e(f"s_bfe_u32 s{S_BLK}, s2, 0x10002")
        a.e(f"s_and_b32 s{S_KQ}, s2, 3")
        a.e(f"s_lshr_b32 s{S_QB}, s2, 5")
        a.e(f"s_bfe_u32 s{S_NT}, s2, 0x20003")
        a.e(f"s_mul_i32 s{S_T0}, s{S_WAVE}, 320")
        for i in range(5):
            a.e(f"v_add_u32 v3, s{S_T0}, v1")
            if i: a.e(f"v_add_u32 v3, {64*i}, v3")
            a.e("v_mul_u32_u24 v4, 3277, v3")
            a.e("v_lshrrev_b32 v4, 16, v4")
            a.e("v_mul_u32_u24 v5, 960, v4")
            a.e("v_lshl_add_u32 v5, v3, 4, v5")
            a.e(f"v_subrev_u32 v{V_WD+i}, {1024*i if i < 4 else 0}, v5")
        a.e("v_lshrrev_b32 v3, 5, v1")
        a.e("v_bfe_u32 v4, v1, 2, 2")
        a.e("v_lshl_add_u32 v4, v3, 3, v4")
        a.e("v_mul_u32_u24 v4, 320, v4")
        a.e("v_bfe_u32 v5, v1, 4, 1")
        a.e("v_bfe_u32 v6, v1, 1, 1")
        a.e("v_lshl_or_b32 v5, v5, 1, v6")
        a.e("v_mul_u32_u24 v5, 80, v5")
        a.e("v_add_u32 v4, v4, v5")
        a.e("v_and_b32 v5, 1, v1")
        a.e("v_lshl_add_u32 v4, v5, 3, v4")
        for s in range(4):
            a.e(f"v_add_u32 v{V_WA+s}, {s*UNIT}, v4")
        a.e("v_and_b32 v5, 31, v1")
        a.e("v_mul_u32_u24 v5, 2560, v5")
        a.e(f"v_lshl_add_u32 v{V_OUT}, v3, 3, v5")
        a.e("s_waitcnt lgkmcnt(0)")
        a.e(f"s_cmp_eq_u32 s{S_BLK}, 0")
        a.e(f"s_cselect_b32 s{S_WO}, s32, s34")
        a.e(f"s_cselect_b32 s{S_WO+1}, s33, s35")
        a.e(f"s_mul_i32 s{S_T0}, s{S_KQ}, {1536*1280}")
        a.e(f"s_add_u32 s{S_WO}, s{S_WO}, s{S_T0}")
        a.e(f"s_addc_u32 s{S_WO+1}, s{S_WO+1}, 0")
        a.e(f"s_mov_b32 s{S_WO+2}, {1536*1280}")
        a.e(f"s_mov_b32 s{S_WO+3}, 0x00020000")
        a.e(f"s_mul_i32 s{S_T0}, s{S_BLK}, 25165824")
        a.e(f"s_lshl_b32 s{S_T1}, s{S_QB}, 3")
        a.e(f"s_lshl_b32 s{S_T2}, s{S_WAVE}, 1")
        a.e(f"s_add_u32 s{S_T1}, s{S_T1}, s{S_T2}")
        a.e(f"s_mul_i32 s{S_T1}, s{S_T1}, 393216")
        a.e(f"s_add_u32 s{S_T0}, s{S_T0}, s{S_T1}")
        a.e(f"s_mul_i32 s{S_T1}, s{S_KQ}, 98304")
        a.e(f"s_add_u32 s{S_T0}, s{S_T0}, s{S_T1}")
        a.e(f"s_add_u32 s{S_O0}, s40, s{S_T0}")
        a.e(f"s_addc_u32 s{S_O0+1}, s41, 0")
        a.e(f"s_mov_b32 s{S_O0+2}, 98304")
        a.e(f"s_mov_b32 s{S_O0+3}, 0x00020000")
        a.e(f"s_add_u32 s{S_O1}, s{S_O0}, 393216")
        a.e(f"s_addc_u32 s{S_O1+1}, s{S_O0+1}, 0")
        a.e(f"s_mov_b32 s{S_O1+2}, 98304")
        a.e(f"s_mov_b32 s{S_O1+3}, 0x00020000")
        a.e(f"s_mov_b32 s{S_WS}, s40"); a.e(f"s_mov_b32 s{S_WS+1}, s41")
        a.e(f"s_mov_b32 s{S_WS+2}, 439353344"); a.e(f"s_mov_b32 s{S_WS+3}, 0x00020000")
        a.e(f"s_mov_b32 s{S_OUT}, s36"); a.e(f"s_mov_b32 s{S_OUT+1}, s37")
        a.e(f"s_mov_b32 s{S_OUT+2}, {8*256*1280*2}"); a.e(f"s_mov_b32 s{S_OUT+3}, 0x00020000")
        a.e(f"s_mov_b32 s{S_DBG}, s38"); a.e(f"s_mov_b32 s{S_DBG+1}, s39")
        a.e(f"s_mov_b32 s{S_DBG+2}, 256"); a.e(f"s_mov_b32 s{S_DBG+3}, 0x00020000")
        a.e(f"s_mul_i32 s{S_DOFF}, s{S_NT}, 320")
        a.e(f"s_mov_b32 s{S_OOFF}, 0")
        a.e(f"s_mul_i32 s{S_M0A}, s{S_WAVE}, 5120")
        a.e(f"s_lshl_b32 s{S_T0}, s{S_BLK}, 5")
        a.e(f"s_lshr_b32 s{S_T1}, s2, 3")
        a.e(f"s_add_u32 s{S_T0}, s{S_T0}, s{S_T1}")
        a.e(f"s_lshl_b32 s{S_CTR}, s{S_T0}, 2")
        a.e(f"s_mul_i32 s{S_T0}, s{S_T0}, {16*40960}")
        a.e(f"s_mul_i32 s{S_T1}, s{S_WAVE}, 10240")
        a.e(f"s_add_u32 s{S_T0}, s{S_T0}, s{S_T1}")
        a.e(f"s_add_u32 s{S_T0}, s{S_T0}, {XBASE}")
        a.e(f"s_mul_i32 s{S_T1}, s{S_KQ}, {4*40960}")
        a.e(f"s_add_u32 s{S_XW}, s{S_T0}, s{S_T1}")
        a.e(f"s_mul_i32 s{S_T1}, s{S_KQ}, 40960")
        a.e(f"s_add_u32 s{S_XR}, s{S_T0}, s{S_T1}")
        a.e(f"s_lshl_b32 s{S_T0}, s{S_QB}, 2")
        a.e(f"s_add_u32 s{S_T0}, s{S_T0}, s{S_WAVE}")
        a.e(f"s_mul_i32 s{S_OUTOFF}, s{S_T0}, {64*2560}")
        a.e(f"s_mul_i32 s{S_T0}, s{S_BLK}, 1280")
        a.e(f"s_add_u32 s{S_OUTOFF}, s{S_OUTOFF}, s{S_T0}")
        a.e(f"s_add_u32 s{S_OUTOFF}, s{S_OUTOFF}, s{S_DOFF}")
        a.e(f"s_mul_i32 s{S_T0}, s{S_KQ}, 80")
        a.e(f"s_add_u32 s{S_OUTOFF}, s{S_OUTOFF}, s{S_T0}")

    def dma(self, u):
        a = self.a
        sl = (u % 4) * UNIT
        a.e(f"s_add_u32 m0, s{S_M0A}, {sl}")
        a.e("s_nop 0")
        for i in range(4):
            a.vmem(f"buffer_load_dwordx4 v{V_WD+i}, s[{S_WO}:{S_WO+3}], s{S_DOFF} offen offset:{1024*i} lds", ("W", u % 4))
        a.e(f"s_add_u32 m0, s{S_M0A}, {sl + 4096}")
        a.e("s_nop 0")
        a.vmem(f"buffer_load_dwordx4 v{V_WD+4}, s[{S_WO}:{S_WO+3}], s{S_DOFF} offen lds", ("W", u % 4))
        a.e(f"s_add_u32 s{S_DOFF}, s{S_DOFF}, {64*1280}")

    def oload(self, ks, t):
        srd = S_O0 if t == 0 else S_O1
        self.a.vmem(f"buffer_load_dwordx4 {vr(self.oreg(ks,t),4)}, v{V_L16}, s[{srd}:{srd+3}], s{S_OOFF} offen offset:{(ks&3)*1024}", ("O", ks % 8, t))

    def wread(self, g, i):
        u, r = divmod(g, 20); s, n5 = divmod(r, 5)
        self.a.ds(f"ds_read_b64_tr_b16 {ar(self.slot(g)+2*i,2)}, v{V_WA+(u%4)} offset:{s*5120 + i*1280 + n5*16}", ("wf", g % 80))

    def body(self, first=False):
        a = self.a
        D = self.opt.get("D2", 5)
        for g in range(80):
            u, r = divmod(g, 20); s, n5 = divmod(r, 5)
            ks = 4 * u + s
            if n5 == 0:
                a.wait_vm([("O", ks % 8, 0), ("O", ks % 8, 1)])
            a.wait_lg(("wf", g % 80))
            for t in range(2):
                acc = ar(A_ACC + (t * 5 + n5) * 16, 16)
                cin = "0" if (first and ks == 0) else acc
                a.e(f"v_mfma_f32_32x32x16_bf16 {acc}, {ar(self.slot(g),4)}, {vr(self.oreg(ks,t),4)}, {cin}")
                self.wread(g + D, t)
            if n5 == 1 or n5 == 2:
                kn = ks - 1 + 8
                if n5 == 1 and (kn & 3) == 0:
                    a.e(f"s_add_u32 s{S_OOFF}, s{S_OOFF}, 4096")
                self.oload(kn, n5 - 1)
            if r == 20 - D - 1:
                a.wait_vm([("W", (u + 1) % 4)])
                a.e("s_barrier")
                self.dma(u + 3)

    def build(self, name):
        a = self.a
        D = self.opt.get("D2", 5)
        a.raw(f".globl {name}\n.p2align 8\n.type {name},@function")
        a.label(name)
        self.setup()
        i0 = len(a.lines)
        self.dma(0)
        for ks in range(4):
            for t in range(2): self.oload(ks, t)
        self.dma(1)
        a.e(f"s_add_u32 s{S_OOFF}, s{S_OOFF}, 4096")
        for ks in range(4, 7):
            for t in range(2): self.oload(ks, t)
        self.dma(2)
        a.wait_vm([("W", 0)])
        a.e("s_barrier")
        for g in range(D):
            self.wread(g, 0); self.wread(g, 1)
        self.body(first=True)
        a.e(f"s_mov_b32 s{S_CNT}, 5")
        a.raw(".p2align 3")
        a.label("K2_LOOP")
        l0 = len(a.lines)
        self.body()
        t1 = a.lines[l0:]
        import copy
        b = Asm(); b.lg = list(a.lg); b.vm = list(a.vm)
        sa = self.a; self.a = b; self.body(); self.a = sa
        assert b.lines == t1, "K2 loop not steady"
        a.e(f"s_sub_u32 s{S_CNT}, s{S_CNT}, 1")
        a.e(f"s_cmp_lg_u32 s{S_CNT}, 0")
        a.e("s_cbranch_scc1 K2_LOOP")
        l1 = len(a.lines)
        a.e("s_waitcnt vmcnt(0) lgkmcnt(0)"); a.vm = []; a.lg = []
        a.e("s_nop 15")
        for g in range(4):
            a.e(f"s_cmp_eq_u32 s{S_KQ}, {g}")
            a.e(f"s_cbranch_scc1 K2_SKIPW{g}")
            for hh in range(3):
                a.e(f"s_add_u32 s{S_T0}, s{S_XW}, {g*40960 + hh*4096}")
                for k in range(4):
                    tl = hh * 4 + k
                    if tl >= 10: break
                    a.e(f"buffer_store_dwordx4 {ar(A_ACC+tl*16+4*g,4)}, v{V_L16}, s[{S_WS}:{S_WS+3}], s{S_T0} offen offset:{k*1024} sc0 sc1")
            a.e(f"s_branch K2_DONEW{g}")
            a.label(f"K2_SKIPW{g}")
            for tl in range(10):
                for m in range(4):
                    a.e(f"v_accvgpr_read_b32 v{V_T+tl*4+m}, a{A_ACC+tl*16+4*g+m}")
            a.label(f"K2_DONEW{g}")
        a.e("s_waitcnt vmcnt(0)")
        a.e("s_barrier")
        a.e(f"s_cmp_lg_u32 s{S_WAVE}, 0")
        a.e("s_cbranch_scc1 K2_WAITED")
        a.e("v_mov_b32 v1, 0")
        a.e("v_mov_b32 v2, 1")
        a.e("s_mov_b64 s[44:45], exec")
        a.e("s_mov_b64 exec, 1")
        a.e(f"buffer_atomic_add v2, v1, s[{S_DBG}:{S_DBG+3}], s{S_CTR} offen sc1")
        a.e(f"s_mov_b32 s{S_SPIN}, 0")
        a.label("K2_POLL")
        a.e(f"buffer_load_dword v3, v1, s[{S_DBG}:{S_DBG+3}], s{S_CTR} offen sc0 sc1")
        a.e("s_waitcnt vmcnt(0)")
        a.e("v_readfirstlane_b32 s46, v3")
        a.e(f"s_add_u32 s{S_SPIN}, s{S_SPIN}, 1")
        a.e("s_cmp_ge_u32 s46, 4")
        a.e("s_cbranch_scc1 K2_POLLED")
        a.e("s_sleep 1")
        a.e(f"s_cmp_lt_u32 s{S_SPIN}, 2000000")
        a.e("s_cbranch_scc1 K2_POLL")
        a.label("K2_POLLED")
        a.e("s_mov_b64 exec, s[44:45]")
        a.label("K2_WAITED")
        a.e("s_barrier")
        for j in range(3):
            a.e(f"s_add_u32 s{S_T0}, s{S_KQ}, {j+1}")
            a.e(f"s_and_b32 s{S_T0}, s{S_T0}, 3")
            a.e(f"s_mul_i32 s{S_T0}, s{S_T0}, {4*40960}")
            a.e(f"s_add_u32 s{S_T0}, s{S_T0}, s{S_XR}")
            for hh in range(3):
                if hh: a.e(f"s_add_u32 s{S_T0}, s{S_T0}, 4096")
                for k in range(4):
                    tl = hh * 4 + k
                    if tl >= 10: break
                    dst = (V_OF if j == 2 else V_T + 40 + j * 40) + tl * 4
                    a.e(f"buffer_load_dwordx4 {vr(dst,4)}, v{V_L16}, s[{S_WS}:{S_WS+3}], s{S_T0} offen offset:{k*1024} sc0 sc1")
        for j in range(3):
            a.e(f"s_waitcnt vmcnt({20 - 10*j})")
            src = V_OF if j == 2 else V_T + 40 + j * 40
            for r in range(40):
                a.e(f"v_add_f32 v{V_T+r}, v{V_T+r}, v{src+r}")
        for tl in range(10):
            t, n5 = divmod(tl, 5)
            a.e(f"v_cvt_pk_bf16_f32 v{V_T+tl*4}, v{V_T+tl*4}, v{V_T+tl*4+1}")
            a.e(f"v_cvt_pk_bf16_f32 v{V_T+tl*4+1}, v{V_T+tl*4+2}, v{V_T+tl*4+3}")
            if n5 == 0:
                a.e(f"s_add_u32 s{S_T0}, s{S_OUTOFF}, {t*32*2560}")
            a.e(f"buffer_store_dwordx2 {vr(V_T+tl*4,2)}, v{V_OUT}, s[{S_OUT}:{S_OUT+3}], s{S_T0} offen offset:{n5*16}")
        a.e("s_waitcnt vmcnt(0)")
        a.label("K2_END")
        a.e("s_endpgm")
        self.paths["k2"] = a.lines[i0:l1] + a.lines[l0:]
```

```python
import sys, json
from asmlib import *
import gen_k1
HEADER = open('concat_heads__gqa_block_cached__gqa_block_cached__near_ridge.s.ref').read().split("; Override launch")[0]

def build(opt):
    a = Asm()
    launches = []
    kds = []
    a.raw('.amdgcn_target "amdgcn-amd-amdhsa--gfx950"\n.text')
    probs = []
    if not opt.get("no_k1"):
        k1 = gen_k1.K1(a, opt)
        k1.build("attn_kernel")
        launches.append("; @launch kernel=attn_kernel grid=(256,1,1) block=(256,1,1) lds=163840")
        kds.append(gen_k1.KD.format(name="attn_kernel", vgpr=512, sgpr=96, acc=256))
        for k, p in k1.paths.items():
            flat = []
            for l in p: flat += l.split("\n")
            probs += check_linear(flat, k)
    if not opt.get("no_k2"):
        import gen_k2
        k2 = gen_k2.K2(a, opt)
        k2.build("oproj_kernel")
        launches.append(k2.launch)
        kds.append(k2.kd)
        for k, p in k2.paths.items():
            flat = []
            for l in p: flat += l.split("\n")
            probs += check_linear(flat, k)
    txt = HEADER + "\n".join(launches) + "\n" + a.text() + '.section .rodata,"a"\n' + "".join(".p2align 6\n" + k for k in kds)
    return txt, probs

if __name__ == "__main__":
    out = sys.argv[1]
    opt = {}
    for kv in sys.argv[2:]:
        k, v = kv.split("=")
        opt[k] = int(v)
    txt, probs = build(opt)
    for p in probs[:40]: print("HAZARD", p)
    open(out, "w").write(txt)
    print("wrote", out, len(txt), "bytes;", len(probs), "hazards")
```

```python
from asmlib import *
import math, struct

def f32bits(x):
    return struct.unpack("<I", struct.pack("<f", x))[0]

S_X, S_WQ, S_K, S_V, S_WS, S_NUL = 8, 12, 16, 20, 24, 4
S_WAVE, S_W3072, S_ROUND, S_B, S_H, S_C = 54, 55, 56, 57, 58, 59
S_KOFF, S_VOFF, S_PA, S_PB, S_PC, S_CNT, S_FLAG, S_SITE = 60, 61, 62, 63, 64, 65, 66, 67
S_T0, S_T1, S_XOFF, S_WQOFF, S_WSOFF, S_T2, S_T3 = 68, 69, 70, 71, 72, 73, 74
S_XM0, S_ITOFF, S_DK, S_DV = 75, 78, 79, 3
S_TW, S_TO1, S_TO2 = 48, 52, 53
V_TMP = 1
V_XD = 9
V_KA, V_VA = 17, 21
V_KD = 25
V_L16 = 28
V_M, V_L, V_AL, V_MX, V_NEGM, V_THR = 29, 31, 33, 35, 37, 39
V_WD = 41
V_FL = 44
V_TO1, V_TO2 = 45, 46
V_P = 48
V_CI = 64
V_XA = 64
V_WA = 68
V_S = 96
V_Q = 160
A_O = 0
A_F = 192
A_ST = 240
RING = 12
PAGE = 12288
WPAGE = [4, 6, 5, 7, 3]
CSC = (192 ** -0.5) * math.log2(math.e)
THR_T = 8.0
LMAX = 65536.0

class K1:
    def __init__(self, a, opt):
        self.a = a
        self.opt = opt
        self.fc = 0
        self.rare = []
        self.paths = {}

    def setup(self):
        a = self.a
        T = 100
        a.e("s_cmp_ge_u32 s2, 256")
        a.e("s_cbranch_scc1 K1_END")
        a.e(f"s_load_dwordx16 s[28:43], s[0:1], 0")
        a.e(f"s_load_dwordx8 s[44:51], s[0:1], 64")
        a.e(f"s_load_dwordx2 s[52:53], s[0:1], 96")
        a.e("v_and_b32 v101, 63, v0")
        a.e("v_lshrrev_b32 v102, 6, v0")
        a.e("v_and_b32 v103, 31, v101")
        a.e(f"v_readfirstlane_b32 s{S_WAVE}, v102")
        a.e("v_lshrrev_b32 v104, 5, v101")
        a.e("v_bfe_u32 v105, v103, 1, 1")
        a.e("v_lshlrev_b32 v105, 2, v105")
        a.e("v_bfe_u32 v106, v103, 2, 2")
        a.e("v_or_b32 v105, v105, v106")
        a.e(f"s_mul_i32 s{S_W3072}, s{S_WAVE}, 3072")
        a.e(f"s_mov_b32 s{S_C}, 0x{f32bits(CSC):08x}")
        a.e(f"v_lshlrev_b32 v{V_L16}, 4, v101")
        a.e(f"v_lshlrev_b32 v{V_TO1}, 7, v101")
        a.e("v_min_u32 v107, 47, v101")
        a.e("v_mul_u32_u24 v108, 2731, v107"); a.e("v_lshrrev_b32 v108, 16, v108"); a.e("v_mul_u32_u24 v108, 9216, v108")
        a.e(f"v_lshl_add_u32 v{V_TO2}, v107, 7, v108")
        a.e(f"v_lshlrev_b32 v{V_FL}, 2, v102")
        a.e(f"v_add_u32 v{V_FL}, {PAGE}, v{V_FL}")
        a.e("v_mul_u32_u24 v107, 384, v103")
        for i in range(4):
            a.e(f"v_add_u32 v108, {2*i}, v104")
            a.e("v_xor_b32 v108, v108, v105")
            a.e(f"v_lshl_add_u32 v{V_KA+i}, v108, 4, v107")
        a.e(f"s_lshl_b32 s{S_T0}, s{S_WAVE}, 13")
        a.e(f"s_add_u32 s{S_XM0}, s{S_T0}, 98304")
        a.e("v_lshlrev_b32 v107, 7, v103")
        a.e(f"v_add_u32 v107, s{S_XM0}, v107")
        for i in range(4):
            a.e(f"v_add_u32 v108, {2*i}, v104")
            a.e("v_xor_b32 v108, v108, v105")
            a.e(f"v_lshl_add_u32 v{V_XA+i}, v108, 4, v107")
        a.e("v_bfe_u32 v109, v101, 2, 2")
        a.e("v_bfe_u32 v110, v101, 4, 1")
        a.e("v_and_b32 v111, 1, v101")
        a.e("v_lshl_or_b32 v110, v110, 1, v111")
        a.e("v_bfe_u32 v111, v101, 1, 1")
        a.e("v_lshlrev_b32 v111, 3, v111")
        a.e("v_lshrrev_b32 v112, 1, v109")
        a.e("v_lshlrev_b32 v112, 2, v112")
        for dtb in range(2):
            for i in range(2):
                a.e(f"v_lshl_add_u32 v113, v104, 2, v109")
                a.e(f"v_add_u32 v113, {8*i}, v113")
                a.e("v_mul_u32_u24 v113, 384, v113")
                a.e(f"v_or_b32 v114, {2*i}, v112")
                a.e("v_or_b32 v114, v114, v104")
                a.e(f"v_add_u32 v115, {4*dtb}, v110")
                a.e("v_xor_b32 v114, v114, v115")
                a.e("v_lshl_add_u32 v113, v114, 4, v113")
                a.e(f"v_add_u32 v{V_VA+2*dtb+i}, v113, v111")
                a.e(f"v_lshl_add_u32 v113, v104, 3, v109")
                a.e(f"v_add_u32 v113, {4*i}, v113")
                a.e("v_mul_u32_u24 v113, 384, v113")
                a.e(f"v_lshl_or_b32 v114, v104, 1, v112")
                a.e(f"v_or_b32 v114, {i}, v114")
                a.e("v_xor_b32 v114, v114, v115")
                a.e("v_lshl_add_u32 v113, v114, 4, v113")
                a.e("v_add_u32 v113, v113, v111")
                a.e(f"v_add_u32 v{V_WA+2*dtb+i}, {3*PAGE}, v113")
        a.e(f"s_mul_i32 s{S_T0}, s{S_WAVE}, 192")
        for i in range(3):
            a.e(f"v_add_u32 v107, s{S_T0}, v101")
            if i: a.e(f"v_add_u32 v107, {64*i}, v107")
            a.e("v_mul_u32_u24 v108, 2731, v107")
            a.e("v_lshrrev_b32 v108, 16, v108")
            a.e("v_bfe_u32 v113, v108, 1, 1")
            a.e("v_lshlrev_b32 v113, 2, v113")
            a.e("v_bfe_u32 v114, v108, 2, 2")
            a.e("v_or_b32 v113, v113, v114")
            a.e("v_lshlrev_b32 v113, 4, v113")
            a.e("v_lshlrev_b32 v114, 4, v107")
            a.e("v_xor_b32 v114, v114, v113")
            a.e(f"v_subrev_u32 v{V_KD+i}, {1024*i}, v114")
            a.e("v_mul_u32_u24 v115, 11904, v108")
            a.e(f"v_add_u32 v{V_WD+i}, v115, v{V_KD+i}")
        a.e(f"s_mul_i32 s{S_T0}, s{S_WAVE}, {64*1280}")
        for i in range(8):
            a.e("v_lshrrev_b32 v107, 3, v101")
            a.e(f"v_add_u32 v107, {8*i}, v107")
            a.e("v_bfe_u32 v113, v107, 1, 1")
            a.e("v_lshlrev_b32 v113, 2, v113")
            a.e("v_bfe_u32 v114, v107, 2, 2")
            a.e("v_or_b32 v113, v113, v114")
            a.e("v_and_b32 v114, 7, v101")
            a.e("v_xor_b32 v113, v113, v114")
            a.e("v_mul_u32_u24 v107, 1280, v107")
            a.e("v_lshl_add_u32 v107, v113, 4, v107")
            a.e(f"v_add_u32 v107, s{S_T0}, v107")
            a.e(f"v_subrev_u32 v{V_XD+i}, {1024*(i&3)}, v107")
        for i in range(8):
            a.e(f"v_accvgpr_write_b32 a{A_ST+i}, v{V_XA+i}")
        a.e("s_waitcnt lgkmcnt(0)")
        if self.opt.get("xcc", 1):
            claim_slot(a, "K1", 50, S_WAVE, 2, S_X, S_T0, S_T1, lds_off=PAGE)
        a.e(f"s_mov_b32 s{S_WS}, s52")
        a.e(f"s_mov_b32 s{S_WS+1}, s53")
        a.e(f"s_mov_b32 s{S_WS+2}, {439353344}")
        a.e(f"s_mov_b32 s{S_WS+3}, 0x00020000")
        a.e(f"s_mov_b32 s{S_NUL}, s52")
        a.e(f"s_mov_b32 s{S_NUL+1}, s53")
        a.e(f"s_mov_b32 s{S_NUL+2}, 0")
        a.e(f"s_mov_b32 s{S_NUL+3}, 0x00020000")
        a.e("v_min_u32 v107, 15, v101")
        a.e("v_lshlrev_b32 v107, 2, v107")
        a.e("v_mov_b32 v108, 0")
        a.e(f"s_lshl_b32 s{S_T0}, s2, 6")
        a.e(f"s_add_u32 s{S_T0}, s{S_T0}, {52<<20}")
        a.e(f"buffer_store_dword v108, v107, s[{S_WS}:{S_WS+3}], s{S_T0} offen")
        a.e(f"s_and_b32 s{S_T0}, s2, 1")
        a.e(f"s_lshl_b32 s{S_T0}, s{S_T0}, 2")
        a.e(f"s_bfe_u32 s{S_T1}, s2, 0x20003")
        a.e(f"s_or_b32 s{S_B}, s{S_T0}, s{S_T1}")
        a.e(f"s_bfe_u32 s{S_T0}, s2, 0x20001")
        a.e(f"s_lshl_b32 s{S_T0}, s{S_T0}, 3")
        a.e(f"s_lshr_b32 s{S_T1}, s2, 5")
        a.e(f"s_or_b32 s{S_H}, s{S_T0}, s{S_T1}")
        a.e(f"s_mov_b32 s{S_ROUND}, 0")
        a.e(f"s_lshl_b32 s{S_T0}, s{S_B}, 5")
        a.e(f"s_add_u32 s{S_T0}, s{S_T0}, s{S_H}")
        a.e(f"s_mul_i32 s{S_ITOFF}, s{S_T0}, 393216")
        a.e(f"s_mul_i32 s{S_XOFF}, s{S_B}, 327680")
        a.e(f"s_mul_i32 s{S_WQOFF}, s{S_H}, 384")
        for s in (S_X, S_WQ, S_K, S_V):
            a.e(f"s_mov_b32 s{s+3}, 0x00020000")

    def srd_xw(self, mode):
        o = [f"s_cmp_eq_u32 s{S_ROUND}, 0"]
        if mode == "cur":
            o += [f"s_cselect_b32 s{S_X}, s28, s38", f"s_cselect_b32 s{S_X+1}, s29, s39", f"s_mov_b32 s{S_X+2}, {8*256*640*2}",
                  f"s_cselect_b32 s{S_WQ}, s34, s44", f"s_cselect_b32 s{S_WQ+1}, s35, s45", f"s_mov_b32 s{S_WQ+2}, {640*6144*2}"]
        else:
            o += [f"s_mov_b32 s{S_X}, s38", f"s_mov_b32 s{S_X+1}, s39", f"s_cselect_b32 s{S_X+2}, {8*256*640*2}, 0",
                  f"s_mov_b32 s{S_WQ}, s44", f"s_mov_b32 s{S_WQ+1}, s45", f"s_cselect_b32 s{S_WQ+2}, {640*6144*2}, 0"]
        return o
    def srd_kv(self, which, mode):
        s, pa, pb = (S_K, 30, 40) if which == "K" else (S_V, 32, 42)
        o = [f"s_cmp_eq_u32 s{S_ROUND}, 0"]
        if mode == "cur":
            o += [f"s_cselect_b32 s{s}, s{pa}, s{pb}", f"s_cselect_b32 s{s+1}, s{pa+1}, s{pb+1}", f"s_mov_b32 s{s+2}, 393216"]
            o += [f"s_add_u32 s{s}, s{s}, s{S_ITOFF}", f"s_addc_u32 s{s+1}, s{s+1}, 0"]
        else:
            o += [f"s_cselect_b32 s{s+2}, 393216, 0", f"s_add_u32 s{s}, s{pb}, s{S_ITOFF}", f"s_addc_u32 s{s+1}, s{pb+1}, 0"]
        return o

    def item_setup(self):
        a = self.a
        for l in self.srd_kv("V", "cur"): a.e(l)
        a.e(f"s_mul_i32 s{S_WSOFF}, s{S_ROUND}, 25165824")
        a.e(f"s_lshl_b32 s{S_T0}, s{S_B}, 3")
        a.e(f"s_lshl_b32 s{S_T1}, s{S_WAVE}, 1")
        a.e(f"s_add_u32 s{S_T0}, s{S_T0}, s{S_T1}")
        a.e(f"s_mul_i32 s{S_T0}, s{S_T0}, 393216")
        a.e(f"s_add_u32 s{S_WSOFF}, s{S_WSOFF}, s{S_T0}")
        a.e(f"s_mul_i32 s{S_T0}, s{S_H}, 12288")
        a.e(f"s_add_u32 s{S_WSOFF}, s{S_WSOFF}, s{S_T0}")
        self.ring_init()
        for i in range(8):
            a.e(f"v_accvgpr_read_b32 v{V_XA+i}, a{A_ST+i}")

    def ring_init(self):
        a = self.a
        a.e(f"s_add_u32 s{S_PA}, s{S_W3072}, 98304")
        a.e(f"s_mov_b32 s{S_PB}, s{S_W3072}")
        a.e(f"s_add_u32 s{S_PC}, s{S_W3072}, 49152")
        a.e(f"s_mov_b32 s{S_FLAG}, 0")
        a.e(f"s_mov_b32 s{S_KOFF}, {5*PAGE}")
        a.e(f"s_mov_b32 s{S_VOFF}, {3*PAGE}")

    def addr_reset(self):
        a = self.a
        for i in range(4):
            a.e(f"v_subrev_u32 v{V_KA+i}, 49152, v{V_KA+i}")

    def nt(self):
        return " nt" if self.opt.get("nt", 1) else ""
    def VM(self, s, tag):
        return (self.opt.get("DMAC", 8), ("VM", s, tag))

    def g_kv_static(self, which, tile, tag=None):
        srd = S_K if which == "K" else S_V
        page = 2 * (tile % 6) + (0 if which == "K" else 1)
        o = [(4, f"s_add_u32 m0, s{S_W3072}, {page*PAGE}"), (4, f"s_mov_b32 s{S_T2}, {tile*PAGE}")]
        for i in range(3):
            o.append(self.VM(f"buffer_load_dwordx4 v{V_KD+i}, s[{srd}:{srd+3}], s{S_T2} offen offset:{1024*i}{self.nt()} lds", tag or (which, tile)))
        return o
    def g_wq(self, u):
        o = [(4, f"s_add_u32 m0, s{S_W3072}, {WPAGE[u % 5]*PAGE}"), (4, f"s_add_u32 s{S_T2}, s{S_WQOFF}, {u*32*12288}")]
        for i in range(3):
            o.append(self.VM(f"buffer_load_dwordx4 v{V_WD+i}, s[{S_WQ}:{S_WQ+3}], s{S_T2} offen offset:{1024*i} lds", ("W", u)))
        return o
    def g_x(self, c, hlf):
        o = [(4, f"s_add_u32 m0, s{S_XM0}, {(c&1)*32768 + hlf*4096}"), (4, f"s_add_u32 s{S_T3}, s{S_XOFF}, {c*128}")]
        for i in range(4):
            o.append(self.VM(f"buffer_load_dwordx4 v{V_XD+4*hlf+i}, s[{S_X}:{S_X+3}], s{S_T3} offen offset:{1024*i} lds", ("X", c)))
        return o
    def emit(self, it):
        a = self.a
        if isinstance(it, tuple):
            if it[0] == "VM": a.vmem(it[1], it[2])
            elif it[0] == "DS": a.ds(it[1], it[2])
            elif it[0] == "WVM": a.wait_vm(it[1])
            elif it[0] == "WLG": a.wait_lg(it[1])
            elif it[0] == "FN": it[1]()
        else:
            a.e(it)
    def emit_all(self, items):
        for c, it in items: self.emit(it)

    def xreg(self, c, t, s):
        return V_S + (c & 1) * 32 + t * 16 + s * 4
    def x_read(self, c, n):
        t, s = n >> 2, n & 3
        self.a.ds(f"ds_read_b128 {vr(self.xreg(c,t,s),4)}, v{V_XA+s} offset:{(c&1)*32768 + t*4096}", ("xr", c))
    def slot(self, n):
        return A_F + 4 * (n % RING)

    def g_touch_x(self):
        T = V_TMP
        S4 = lambda ls: [(4, l) for l in ls]
        o = S4([f"s_lshr_b32 s{S_T0}, s2, 3", f"s_lshl_b32 s{S_T0}, s{S_T0}, 2", f"s_add_u32 s{S_T0}, s{S_T0}, s{S_WAVE}",
                f"s_and_b32 s{S_T1}, s2, 1", f"s_mul_i32 s{S_T1}, s{S_T1}, 1310720",
                f"s_mul_i32 s{S_T0}, s{S_T0}, 10240", f"s_add_u32 s{S_T1}, s{S_T1}, s{S_T0}"])
        o.append(self.VM(f"buffer_load_dword v47, v{V_TO1}, s[{S_X}:{S_X+3}], s{S_T1} offen", "T"))
        o += S4([f"v_min_u32 v{T+3}, {15*128}, v{V_TO1}", f"s_add_u32 s{S_T1}, s{S_T1}, 8192"])
        o.append(self.VM(f"buffer_load_dword v47, v{T+3}, s[{S_X}:{S_X+3}], s{S_T1} offen", "T"))
        return o

    def g_touch_w(self):
        T = V_TMP
        S4 = lambda ls: [(4, l) for l in ls]
        o = S4([f"s_lshr_b32 s{S_T0}, s2, 3", f"s_lshl_b32 s{S_T0}, s{S_T0}, 2", f"s_add_u32 s{S_T0}, s{S_T0}, s{S_WAVE}",
                f"s_bfe_u32 s{S_T1}, s2, 0x20001", f"s_mul_i32 s{S_T1}, s{S_T1}, 3072",
                f"s_mul_i32 s{S_T0}, s{S_T0}, {5*12288}", f"s_add_u32 s{S_T1}, s{S_T1}, s{S_T0}"])
        o.append(self.VM(f"buffer_load_dword v47, v{V_TO2}, s[{S_WQ}:{S_WQ+3}], s{S_T1} offen", "T"))
        o += S4([f"s_add_u32 s{S_T1}, s{S_T1}, 24576"])
        o.append(self.VM(f"buffer_load_dword v47, v{V_TO2}, s[{S_WQ}:{S_WQ+3}], s{S_T1} offen", "T"))
        o += S4([f"v_min_u32 v{T+3}, {23*128}, v{V_TO1}", f"s_add_u32 s{S_T1}, s{S_T1}, 24576"])
        o.append(self.VM(f"buffer_load_dword v47, v{T+3}, s[{S_WQ}:{S_WQ+3}], s{S_T1} offen", "T"))
        return o

    def g_touch_o(self, cold=False):
        T = V_TMP
        S4 = lambda ls: [(4, l) for l in ls]
        if cold:
            o = S4([f"s_mov_b32 s{S_NUL+2}, 0", f"s_mov_b32 s{S_T1}, 0"])
        else:
            o = S4([f"s_cmp_lt_u32 s2, 128", f"s_cselect_b32 s{S_NUL}, s36, s46", f"s_cselect_b32 s{S_NUL+1}, s37, s47",
                    f"s_cmp_eq_u32 s{S_ROUND}, 0", f"s_cselect_b32 s{S_NUL+2}, 0, {6144*640*2}",
                    f"s_and_b32 s{S_T0}, s2, 127", f"s_lshl_b32 s{S_T0}, s{S_T0}, 2", f"s_add_u32 s{S_T0}, s{S_T0}, s{S_WAVE}", f"s_mul_i32 s{S_T1}, s{S_T0}, 15360"])
        o.append(self.VM(f"buffer_load_dword v47, v{V_TO1}, s[{S_NUL}:{S_NUL+3}], s{S_T1} offen", "T"))
        o += S4([f"v_min_u32 v{T+3}, {55*128}, v{V_TO1}", f"s_add_u32 s{S_T1}, s{S_T1}, 8192"])
        o.append(self.VM(f"buffer_load_dword v47, v{T+3}, s[{S_NUL}:{S_NUL+3}], s{S_T1} offen", "T"))
        return o

    def cold_loads(self):
        a = self.a
        for l in self.srd_xw("cur") + self.srd_kv("K", "cur"): a.e(l)
        for u in range(3): self.emit_all(self.g_wq(u))
        self.emit_all(self.g_touch_x())
        self.emit_all(self.g_wq(3))
        self.emit_all(self.g_touch_w())
        self.emit_all(self.g_touch_o(cold=True))
        for c in range(2):
            for h in range(2): self.emit_all(self.g_x(c, h))
        self.emit_all(self.g_kv_static("K", 0))
        for i in range(24):
            a.vmem(f"buffer_load_dword v47, v{V_L16}, s[{S_NUL}:{S_NUL+3}], 0 offen", "ST")

    def phase_q(self):
        a = self.a
        D = self.opt.get("DQ", 5)
        a.c("---- phase Q")
        q0 = len(a.lines)
        a.wait_vm([("X", 0), ("W", 0)])
        a.e("s_barrier")
        for n in range(8): self.x_read(0, n)
        base = self.fc
        def wread(g, i):
            u, r = divmod(g, 12); s, dt = divmod(r, 6)
            off = (WPAGE[u % 5] - 3) * PAGE + s * 6144 + (dt >> 1) * 128
            a.ds(f"ds_read_b64_tr_b16 {ar(self.slot(base+g)+2*i,2)}, v{V_WA+2*(dt&1)+i} offset:{off}", ("wf", g))
        for g in range(D):
            wread(g, 0); wread(g, 1)
        queue = self.g_kv_static("K", 1) + self.g_kv_static("V", 0)
        NG = 240
        last_vm = -9
        for g in range(NG):
            u, r = divmod(g, 12); s, dt = divmod(r, 6)
            c = u >> 1; sidx = 2 * (u & 1) + s
            if r == 0 and (u & 1) == 0:
                a.wait_lg(("xr", c))
                if c + 2 < 10: queue += self.g_x(c + 2, 0) + self.g_x(c + 2, 1)
            a.wait_lg(("wf", g))
            for t in range(2):
                acc = ar(A_O + (t * 6 + dt) * 16, 16)
                cin = "0" if (u == 0 and s == 0) else acc
                a.e(f"v_mfma_f32_32x32x16_bf16 {acc}, {ar(self.slot(base+g),4)}, {vr(self.xreg(c,t,sidx),4)}, {cin}")
                if g + D < NG: wread(g + D, t)
                m = 2 * g + t
                while queue:
                    cst, it = queue[0]
                    if isinstance(it, tuple) and it[0] == "VM":
                        if m - last_vm < self.opt.get("QSP", 2): break
                        last_vm = m
                        self.emit(it); queue.pop(0)
                        break
                    self.emit(it); queue.pop(0)
            if r == 12 - D - 1 and u + 1 < 20:
                a.wait_vm([("W", u + 1)])
                a.e("s_barrier")
                if u + 4 < 20: queue += self.g_wq(u + 4)
                elif u >= 17:
                    pass
            if (u & 1) == 1 and c + 1 < 10:
                if r == 1: a.wait_vm([("X", c + 1)])
                if 1 <= r <= 8: self.x_read(c + 1, r - 1)
        self.emit_all(queue)
        self.fc = base + NG
        a.e("s_barrier")
        if self.opt.get("qnodma"):
            a.lines[q0:] = [l for l in a.lines[q0:] if not l.strip().startswith("buffer_load")]

    def q_convert(self):
        a = self.a
        a.e("s_nop 15")
        for t in range(2):
            for ks in range(12):
                dt, hlf = ks >> 1, ks & 1
                for m in range(8):
                    a.e(f"v_accvgpr_read_b32 v{V_TMP+m}, a{A_O+(t*6+dt)*16+8*hlf+m}")
                if not self.opt.get("dump_q"):
                    for m in range(8):
                        a.e(f"v_mul_f32 v{V_TMP+m}, s{S_C}, v{V_TMP+m}")
                for m in range(4):
                    a.e(f"v_cvt_pk_bf16_f32 v{V_Q+t*48+ks*4+m}, v{V_TMP+2*m}, v{V_TMP+2*m+1}")

    def S(self, p, t, e): return V_S + p * 32 + t * 16 + e

    def maxchain(self, p, t):
        o = []
        mx = f"v{V_MX+t}"
        s = lambda e: f"v{self.S(p,t,e)}"
        o.append((4, f"v_max3_f32 {mx}, {s(0)}, {s(1)}, {s(2)}"))
        for e in range(3, 15, 2):
            o.append((4, f"v_max3_f32 {mx}, {mx}, {s(e)}, {s(e+1)}"))
        o.append((4, f"v_max_f32 {mx}, {mx}, {s(15)}"))
        return o

    def q_max(self, p, t, site, first, safe):
        o = self.maxchain(p, t)
        mx = f"v{V_MX+t}"
        if first:
            tmp = f"v{V_TMP+t}"
            o.append((4, f"v_mov_b32 {tmp}, {mx}"))
            o.append((8, "s_nop 1"))
            o.append((4, f"v_permlane32_swap_b32 {mx}, {tmp}"))
            o.append((4, f"v_max_f32 v{V_M+t}, {mx}, {tmp}"))
            o.append((4, f"v_sub_f32 v{V_NEGM+t}, 0, v{V_M+t}"))
            o.append((4, f"v_mov_b32 v{V_L+t}, 0"))
            if safe:
                o.append((4, f"v_add_f32 v{V_THR+t}, 0x{f32bits(THR_T):08x}, v{V_M+t}"))
                o.append((4, f"v_mov_b32 v{V_AL+t}, 1.0"))
            else:
                for e in range(16):
                    o.append((4, f"v_mov_b32 v{V_CI+t*16+e}, v{V_NEGM+t}"))
        else:
            lab = f"RARE_{site}_{t}"; ret = f"RET_{site}_{t}"
            o.append((4, f"v_cmp_gt_f32 vcc, {mx}, v{V_THR+t}"))
            o.append((4, f"s_cbranch_vccnz {lab}\n{ret}:"))
            self.rare.append((lab, t, ret))
        return o

    def sub(self, p, t, e):
        return (4, f"v_add_f32 v{self.S(p,t,e)}, v{self.S(p,t,e)}, v{V_NEGM+t}")
    def exp(self, p, t, e):
        return (8, f"v_exp_f32 v{self.S(p,t,e)}, v{self.S(p,t,e)}")
    def add(self, p, t, e):
        return (4, f"v_add_f32 v{V_L+t}, v{V_L+t}, v{self.S(p,t,e)}")
    def cvt(self, p, t, m):
        return (4, f"v_cvt_pk_bf16_f32 v{V_P+t*8+m}, v{self.S(p,t,2*m)}, v{self.S(p,t,2*m+1)}")

    @staticmethod
    def inter(x, y, ny=1, lag=0):
        o = []; y = list(y)
        for k, it in enumerate(x):
            o.append(it)
            if k >= lag:
                for _ in range(ny):
                    if y: o.append(y.pop(0))
        return o + y

    def QB(self, p, site, first, safe):
        if safe or first:
            o = self.q_max(p, 0, site, first, safe) + self.q_max(p, 1, site, first, safe)
            o += [self.sub(p, 0, e) for e in range(8)]
            o += self.inter([self.exp(p, 0, e) for e in range(8)], [self.sub(p, 1, e) for e in range(8)])
            o += self.inter([self.exp(p, 1, e) for e in range(8)], [self.sub(p, 0, e) for e in range(8, 16)])
            o += [self.sub(p, 1, e) for e in range(8, 16)]
            if not safe:
                o += [self.add(p, 0, e) for e in range(8)] + [self.add(p, 1, e) for e in range(8)]
            return o
        ex = [self.exp(p, 0, e) for e in range(8)] + [self.exp(p, 1, e) for e in range(8)]
        ad = [self.add(p, 0, e) for e in range(8)] + [self.add(p, 1, e) for e in range(8)]
        return self.inter(ex, ad, 1, 1)

    def QA(self, p, safe):
        c1 = [self.cvt(p, 0, m) for m in range(4)] + [self.cvt(p, 1, m) for m in range(4)]
        if safe:
            a1 = [self.add(p, 0, e) for e in range(8)] + [self.add(p, 1, e) for e in range(8)]
            o = self.inter([self.exp(p, 0, e) for e in range(8, 16)], c1 + a1[:4], 2)
            o += self.inter([self.exp(p, 1, e) for e in range(8, 16)], a1[4:] + [self.cvt(p, 0, m) for m in range(4, 8)], 2)
            o += [self.add(p, 0, e) for e in range(8, 16)]
            o += [self.cvt(p, 1, m) for m in range(4, 8)]
            o += [self.add(p, 1, e) for e in range(8, 16)]
            return o
        o = self.inter([self.exp(p, 0, e) for e in range(8, 16)], c1, 1)
        y = []
        for m in range(4): y += [self.add(p, 0, 8 + 2 * m), self.add(p, 0, 9 + 2 * m), self.cvt(p, 0, 4 + m)]
        o += self.inter([self.exp(p, 1, e) for e in range(8, 16)], y, 2)
        for m in range(4): o += [self.add(p, 1, 8 + 2 * m), self.add(p, 1, 9 + 2 * m), self.cvt(p, 1, 4 + m)]
        return o

    def k_read(self, n, ks, kc):
        self.a.ds(f"ds_read_b128 {ar(self.slot(n),4)}, v{V_KA+(ks&3)} offset:{kc + (ks>>2)*128}", ("f", n))
    def v_read(self, n, idx, vc, i):
        ks2, dt = divmod(idx, 6)
        self.a.ds(f"ds_read_b64_tr_b16 {ar(self.slot(n)+2*i,2)}, v{V_VA+2*(dt&1)+i} offset:{vc + PAGE + ks2*6144 + (dt>>1)*128}", ("f", n))

    def iteration(self, odd, site, safe=False, first=False, czero=False, last=False, j=None, vq=None):
        a = self.a
        self._it0 = len(a.lines)
        D = self.opt.get("D", 5)
        G = self.opt.get("G", 2)
        BUD = self.opt.get("BUD", 24)
        do_qk = not last; do_pv = not first
        cur = 1 if odd else 0; nxt = 1 - cur
        kc = 0 if odd else 24576
        kc_next = 24576 if odd else 0
        vc = 24576 if odd else 0
        base = self.fc
        nk = 12 if do_qk else 0
        nv = 12 if do_pv else 0
        nolook = last or (j == 30)
        def reads_for(step):
            n = base + step
            if step < nk: return [lambda: self.k_read(n, step, kc)]
            if step < nk + nv:
                return [lambda: self.v_read(n, step - nk, vc, 0), lambda: self.v_read(n, step - nk, vc, 1)]
            if nolook: return []
            return [lambda: self.k_read(n, step - nk - nv, kc_next)]
        qa = [] if first else self.QA(cur, safe)
        qb = [] if last else self.QB(nxt, site, first, safe)
        def dma_group(which):
            if which == "K":
                m0 = f"s_add_u32 m0, s{S_PA}, 24576" if odd else f"s_mov_b32 m0, s{S_PB}"
                srd, so = S_K, S_KOFF
            else:
                m0 = f"s_add_u32 m0, s{S_PC}, 36864" if odd else f"s_add_u32 m0, s{S_PA}, 12288"
                srd, so = S_V, S_VOFF
            tag = which if j is None else (which, j + (6 if which == "K" else 4))
            o = [(4, m0)]
            for i in range(3):
                o.append(self.VM(f"buffer_load_dwordx4 v{V_KD+i}, s[{srd}:{srd+3}], s{so} offen offset:{1024*i}{self.nt()} lds", tag))
            o.append((4, f"s_add_u32 s{so}, s{so}, {PAGE}"))
            return o
        if vq is None:
            vq = dma_group("K") + dma_group("V")
        else:
            vq = [x for w in vq for x in (dma_group(w) if isinstance(w, str) else w)]
        if self.opt.get("nodma"): vq = []
        pinA = {}; pinB = {}
        if not odd and not last:
            if not czero:
                pinA[0] = [(4, f"s_sub_u32 s{S_DV}, s{S_PB}, s{S_PA}")] + [(4, f"v_add_u32 v{V_VA+i}, s{S_DV}, v{V_VA+i}") for i in range(4)]
            pinB[0] = [(4, f"s_sub_u32 s{S_DK}, s{S_PC}, s{S_PB}")] + [(4, f"v_add_u32 v{V_KA+i}, s{S_DK}, v{V_KA+i}") for i in range(4)]
        BAR = 12 - D - 2
        VSP = self.opt.get("VSP", 3)
        st_ = {"vm": -9, "m": 0}
        def run_phase(steps, mk, queue, pins, qmin, off, vq):
            carry = 0
            for st in range(steps):
                gs = off + st
                if a.wait_lg(("f", base + min(gs + (G - 1 - (gs % G)), nk + nv - 1))): carry -= 4
                rd = reads_for(gs + D) if (do_pv or gs + D < nk) else []
                for t in range(2):
                    a.e(mk(st, t))
                    st_["m"] += 1
                    carry += BUD
                    if t < len(rd): rd[t](); carry -= 4
                    if t == 0 and st in pins:
                        for cst, it in pins[st]:
                            self.emit(it); carry -= cst
                    while vq:
                        cst, it = vq[0]
                        isvm = isinstance(it, tuple) and it[0] == "VM"
                        if isvm and st_["m"] - st_["vm"] < VSP: break
                        vq.pop(0); self.emit(it); carry -= cst
                        if isvm:
                            st_["vm"] = st_["m"]; break
                        if it.startswith("s_add_u32 m0") or it.startswith("s_mov_b32 m0"):
                            st_["vm"] = max(st_["vm"], st_["m"] - VSP + 1)
                            break
                    while queue and 2 * st + t >= qmin and carry >= queue[0][0]:
                        cst, it = queue.pop(0); self.emit(it); carry -= cst
                    if carry > 8: carry = 8
            self.emit_all(queue); queue.clear()
        def mk_qk(st, t):
            acc = vr(self.S(nxt, t, 0), 16)
            c0 = "0" if (safe or first) else vr(V_CI + t * 16, 16)
            return f"v_mfma_f32_32x32x16_bf16 {acc}, {ar(self.slot(base+st),4)}, {vr(V_Q+t*48+st*4,4)}, {c0 if st == 0 else acc}"
        def mk_pv(st, t):
            ks2, dt = divmod(st, 6)
            acc = ar(A_O + (t * 6 + dt) * 16, 16)
            return f"v_mfma_f32_32x32x16_bf16 {acc}, {ar(self.slot(base+nk+st),4)}, {vr(V_P+t*8+ks2*4,4)}, {'0' if (czero and ks2 == 0) else acc}"
        a.c(f"---- iter site {site} phase A")
        if do_qk:
            run_phase(12, mk_qk, qa, pinA, 0, 0, vq)
        else:
            for st in range(D):
                for r in reads_for(st): r()
            k = 0
            for cst, it in qa:
                self.emit(it); k += 1
                if vq and k % 3 == 0:
                    self.emit(vq.pop(0)[1])
            a.e("s_nop 1")
        if not (last and not safe):
            for c_, it in vq:
                self.emit(it)
                if isinstance(it, str) and " m0," in it: a.e("s_nop 0")
            vq = []
        a.c(f"---- iter site {site} phase B")
        if do_pv:
            if not last:
                if j is None: bar = [(4, f"s_waitcnt vmcnt(18)"), (4, "s_barrier")]
                else: bar = [(4, ("WVM", [("K", j + 2), ("V", j + 1)])), (4, "s_barrier")]
                pinB.setdefault(BAR, []); pinB[BAR] = pinB[BAR] + bar
            elif not safe:
                pinB[0] = [(4, f"v_add_f32 v{V_TMP}, v{V_L}, v{V_L+1}"),
                           (4, f"v_cmp_nlt_f32 vcc, v{V_TMP}, v{V_THR}"),
                           (4, "s_cmp_lg_u64 vcc, 0"),
                           (4, f"s_cselect_b32 s{S_T0}, 1, 0"),
                           (4, f"v_mov_b32 v{V_TMP+7}, s{S_T0}"),
                           (4, ("DS", f"ds_write_b32 v{V_FL}, v{V_TMP+7}", "fl"))]
                pinB[5] = [(4, ("WLG", "fl")), (4, "s_barrier"), (4, f"v_mov_b32 v{V_TMP+6}, {PAGE}"),
                           (4, ("DS", f"ds_read_b128 v[{V_TMP+1}:{V_TMP+4}], v{V_TMP+6}", "fl"))]
            run_phase(12, mk_pv, qb, pinB, self.opt.get("QMIN", 4), nk, vq)
            self.emit_all(vq)
            if safe and not last:
                a.e(f"s_cmp_lg_u32 s{S_FLAG}, 0")
                a.e(f"s_mov_b32 s{S_SITE}, {site}")
                a.e(f"s_cbranch_scc1 RESCALE")
                a.label(f"RESC_RET_{site}")
        else:
            a.e("s_nop 7"); a.e("s_nop 3")
            a.wait_vm([("K", 1), ("V", 0)])
            a.e("s_barrier")
            for st in range(nk, nk + D):
                for r in reads_for(st): r()
            self.emit_all(qb)
        self.fc = base + nk + nv
        if self.opt.get("novalu") and not first:
            a.lines[self._it0:] = [l for l in a.lines[self._it0:] if not any(l.strip().startswith(x) for x in ("v_exp", "v_add_f32", "v_cvt"))]

    def stamp(self, i):
        if not self.opt.get("stamp"): return
        a = self.a
        a.e("s_memrealtime s[76:77]")
        a.e("s_memtime s[100:101]")
        a.e("s_waitcnt lgkmcnt(0)"); a.lg = []
        a.e(f"s_cmp_eq_u32 s{S_ROUND}, 0")
        a.e(f"s_cselect_b32 s{80+i}, s76, s{80+i}")
        a.e(f"s_cselect_b32 s{85+i}, s{85+i}, s76")
        a.e(f"s_cselect_b32 s{90+i}, s100, s{90+i}")
        a.e(f"s_cselect_b32 s{95+i}, s{95+i}, s100")

    def stamp_store(self):
        if not self.opt.get("stamp"): return
        a = self.a
        a.e(f"s_lshl_b32 s{S_T0}, s2, 9")
        a.e(f"s_lshl_b32 s{S_T1}, s{S_WAVE}, 7")
        a.e(f"s_add_u32 s{S_T0}, s{S_T0}, s{S_T1}")
        a.e(f"s_add_u32 s{S_T0}, s{S_T0}, {64<<20}")
        a.e("v_mov_b32 v1, 0")
        for i in range(20):
            a.e(f"v_mov_b32 v2, s{80+i}")
            a.e(f"buffer_store_dword v2, v1, s[{S_WS}:{S_WS+3}], s{S_T0} offen offset:{4*i}")
            a.e("s_waitcnt vmcnt(0)")

    def rotate(self):
        a = self.a
        a.e(f"s_mov_b32 s{S_T0}, s{S_PA}")
        a.e(f"s_mov_b32 s{S_PA}, s{S_PB}")
        a.e(f"s_mov_b32 s{S_PB}, s{S_PC}")
        a.e(f"s_mov_b32 s{S_PC}, s{S_T0}")

    def epilogue(self):
        a = self.a
        a.c("---- epilogue")
        for t in range(2):
            a.e(f"v_mov_b32 v{V_TMP+t}, v{V_L+t}")
        a.e("s_nop 1")
        for t in range(2):
            a.e(f"v_permlane32_swap_b32 v{V_L+t}, v{V_TMP+t}")
        for t in range(2):
            a.e(f"v_add_f32 v{V_L+t}, v{V_L+t}, v{V_TMP+t}")
        for t in range(2):
            a.e(f"v_rcp_f32 v{V_L+t}, v{V_L+t}")
        a.e("s_nop 7")
        k = 0
        for t in range(2):
            for ks in range(12):
                dt, hlf = ks >> 1, ks & 1
                tb = V_S + (k % 4) * 16; k += 1
                for m in range(8):
                    a.e(f"v_accvgpr_read_b32 v{tb+m}, a{A_O+(t*6+dt)*16+8*hlf+m}")
                for m in range(8):
                    a.e(f"v_mul_f32 v{tb+m}, v{tb+m}, v{V_L+t}")
                for m in range(4):
                    a.e(f"v_cvt_pk_bf16_f32 v{tb+8+m}, v{tb+2*m}, v{tb+2*m+1}")
                if ks % 4 == 0:
                    a.e(f"s_add_u32 s{S_T2}, s{S_WSOFF}, {t*393216 + (ks>>2)*4096}")
                a.vmem(f"buffer_store_dwordx4 {vr(tb+8,4)}, v{V_L16}, s[{S_WS}:{S_WS+3}], s{S_T2} offen offset:{(ks&3)*1024}{self.opt.get('ost','')}", "ST")

    def rare_blocks(self, sites):
        a = self.a
        for lab, t, ret in self.rare:
            a.label(lab)
            mx = f"v{V_MX+t}"; tmp = f"v{V_TMP+t}"
            a.e(f"v_mov_b32 {tmp}, {mx}")
            a.e("s_nop 1")
            a.e(f"v_permlane32_swap_b32 {mx}, {tmp}")
            a.e(f"v_max3_f32 {mx}, {mx}, {tmp}, v{V_M+t}")
            a.e(f"v_sub_f32 {tmp}, v{V_M+t}, {mx}")
            a.e(f"v_exp_f32 v{V_AL+t}, {tmp}")
            a.e(f"v_mov_b32 v{V_M+t}, {mx}")
            a.e(f"v_sub_f32 v{V_NEGM+t}, 0, {mx}")
            a.e(f"v_add_f32 v{V_THR+t}, 0x{f32bits(THR_T):08x}, {mx}")
            a.e(f"s_mov_b32 s{S_FLAG}, 1")
            a.e(f"s_branch {ret}")
        a.label("RESCALE")
        a.e("s_nop 15")
        for t in range(2):
            a.e(f"v_mul_f32 v{V_L+t}, v{V_L+t}, v{V_AL+t}")
            for r0 in range(0, 96, 8):
                for m in range(8): a.e(f"v_accvgpr_read_b32 v{V_TMP+m}, a{A_O+t*96+r0+m}")
                for m in range(8): a.e(f"v_mul_f32 v{V_TMP+m}, v{V_TMP+m}, v{V_AL+t}")
                for m in range(8): a.e(f"v_accvgpr_write_b32 a{A_O+t*96+r0+m}, v{V_TMP+m}")
            a.e(f"v_mov_b32 v{V_AL+t}, 1.0")
        a.e(f"s_mov_b32 s{S_FLAG}, 0")
        a.e("s_nop 1")
        for s in sites[:-1]:
            a.e(f"s_cmp_eq_u32 s{S_SITE}, {s}")
            a.e(f"s_cbranch_scc1 RESC_RET_{s}")
        a.e(f"s_branch RESC_RET_{sites[-1]}")

    def dump_q(self):
        a = self.a
        for t in range(2):
            for ks in range(12):
                if ks % 4 == 0:
                    a.e(f"s_add_u32 s{S_T2}, s{S_WSOFF}, {t*393216 + (ks>>2)*4096}")
                a.vmem(f"buffer_store_dwordx4 {vr(V_Q+t*48+ks*4,4)}, v{V_L16}, s[{S_WS}:{S_WS+3}], s{S_T2} offen offset:{(ks&3)*1024}", "ST")

    def align_fc(self):
        while self.fc % RING: self.fc += 1

    def build(self, name):
        a = self.a
        D = self.opt.get("D", 5)
        a.raw(f".globl {name}\n.p2align 8\n.type {name},@function")
        a.label(name)
        self.setup()
        a.label("K1_COLD")
        i0 = len(a.lines)
        self.cold_loads()
        cold_vm = list(a.vm)
        a.label("K1_ITEM")
        self.stamp(0)
        self.item_setup()
        self.phase_q()
        self.stamp(1)
        for w, tl in (("K", 2), ("K", 3), ("V", 1), ("K", 4), ("V", 2)):
            self.emit_all(self.g_kv_static(w, tl))
        self.align_fc()
        for st in range(D): self.k_read(self.fc + st, st, 0)
        self.q_convert()
        self.iteration(True, 9, first=True, j=-1)
        self.iteration(False, 0, czero=True, j=0)
        self.rotate()
        self.stamp(2)
        a.e(f"s_mov_b32 s{S_CNT}, 12")
        a.raw(".p2align 3")
        a.label("K1_LOOP")
        l0 = len(a.lines)
        self.iteration(True, 1)
        self.iteration(False, 2)
        self.rotate()
        a.e(f"s_sub_u32 s{S_CNT}, s{S_CNT}, 1")
        a.e(f"s_cmp_lg_u32 s{S_CNT}, 0")
        a.e("s_cbranch_scc1 K1_LOOP")
        l1 = len(a.lines)
        a.vm = []
        for jj in (22, 23, 24):
            a.vm += [("K", jj + 6)] * 3 + [("V", jj + 4)] * 3
        S4 = lambda ls: [(4, l) for l in ls]
        self.iteration(True, 3, j=25, vq=["K", "V", S4(self.srd_xw("next"))])
        self.iteration(False, 4, j=26, vq=["V", self.g_wq(0)])
        self.rotate()
        self.iteration(True, 5, j=27, vq=["V", self.g_wq(1)])
        self.iteration(False, 6, j=28, vq=[self.g_wq(2), S4(self.srd_kv("K", "next")), self.g_touch_x()])
        self.rotate()
        self.iteration(True, 7, j=29, vq=[self.g_wq(3), self.g_touch_w(), self.g_touch_o()])
        self.iteration(False, 8, j=30, vq=[self.g_x(0, 0), self.g_x(0, 1)])
        self.rotate()
        a.e(f"v_mov_b32 v{V_THR}, 0x{f32bits(LMAX):08x}")
        self.iteration(True, 10, j=31, last=True, vq=[self.g_x(1, 0), self.g_x(1, 1), self.g_kv_static("K", 0, tag=("K", 0))])
        a.wait_lg("fl")
        a.e(f"v_or3_b32 v{V_TMP}, v{V_TMP+1}, v{V_TMP+2}, v{V_TMP+3}")
        a.e(f"v_or_b32 v{V_TMP}, v{V_TMP}, v{V_TMP+4}")
        a.e("s_nop 0")
        a.e(f"v_readfirstlane_b32 s{S_T0}, v{V_TMP}")
        a.e("s_nop 3")
        if self.opt.get("force_safe"): a.e(f"s_mov_b32 s{S_T0}, 1")
        a.e(f"s_cmp_lg_u32 s{S_T0}, 0")
        a.e("s_cbranch_scc1 K1_SAFE")
        a.e("s_nop 3")
        self.stamp(3)
        self.addr_reset()
        a.vm = [t for t in a.vm if t[0] in ("W", "X", "T") or t == ("K", 0)]
        self.epilogue()
        assert a.vm == cold_vm[-len(a.vm):], (a.vm, cold_vm)
        self.stamp(4)
        self.paths["fast"] = a.lines[i0:l1] + a.lines[l0:]
        a.e(f"s_add_u32 s{S_ROUND}, s{S_ROUND}, 1")
        a.e(f"s_cmp_lt_u32 s{S_ROUND}, 2")
        a.e("s_cbranch_scc1 K1_ITEM")
        a.label("K1_FIN")
        a.e("s_waitcnt vmcnt(0)")
        self.stamp_store()
        a.label("K1_END")
        a.e("s_endpgm")
        a.label("K1_SAFE")
        s0 = len(a.lines)
        a.e("s_waitcnt vmcnt(0) lgkmcnt(0)"); a.vm = []; a.lg = []
        a.e("s_barrier")
        self.addr_reset()
        for l in self.srd_kv("K", "cur") + self.srd_kv("V", "cur"): a.e(l)
        self.ring_init()
        for w, tl in (("K", 0), ("K", 1), ("K", 2), ("V", 0), ("K", 3), ("V", 1), ("K", 4), ("V", 2)):
            self.emit_all(self.g_kv_static(w, tl))
        a.wait_vm([("K", 0)])
        a.e("s_barrier")
        self.align_fc()
        for st in range(D): self.k_read(self.fc + st, st, 0)
        self.iteration(True, 19, safe=True, first=True, j=-1)
        self.iteration(False, 20, safe=True, czero=True, j=0)
        self.rotate()
        a.e(f"s_mov_b32 s{S_CNT}, 15")
        a.label("K1_SLOOP")
        sl0 = len(a.lines)
        self.iteration(True, 21, safe=True)
        self.iteration(False, 22, safe=True)
        self.rotate()
        a.e(f"s_sub_u32 s{S_CNT}, s{S_CNT}, 1")
        a.e(f"s_cmp_lg_u32 s{S_CNT}, 0")
        a.e("s_cbranch_scc1 K1_SLOOP")
        sl1 = len(a.lines)
        self.iteration(True, 23, safe=True, last=True, vq=[])
        a.e("s_nop 15")
        self.addr_reset()
        self.epilogue()
        a.e("s_waitcnt vmcnt(0) lgkmcnt(0)"); a.vm = []; a.lg = []
        a.e("s_barrier")
        self.paths["safe"] = a.lines[s0:sl1] + a.lines[sl0:]
        a.e(f"s_add_u32 s{S_ROUND}, s{S_ROUND}, 1")
        a.e(f"s_cmp_lt_u32 s{S_ROUND}, 2")
        a.e("s_cbranch_scc1 K1_COLD")
        a.e("s_branch K1_FIN")
        self.rare_blocks([20, 21, 22])

KD = """.amdhsa_kernel {name}
  .amdhsa_next_free_vgpr {vgpr}
  .amdhsa_next_free_sgpr {sgpr}
  .amdhsa_accum_offset {acc}
  .amdhsa_group_segment_fixed_size 0
  .amdhsa_kernarg_size 104
  .amdhsa_user_sgpr_count 2
  .amdhsa_user_sgpr_kernarg_segment_ptr 1
  .amdhsa_system_sgpr_workgroup_id_x 1
.end_amdhsa_kernel
"""
```

```python
from asmlib import *
import gen_k1

S_WO, S_O0, S_O1, S_WS, S_OUT, S_DBG = 8, 12, 16, 20, 24, 28
S_WAVE, S_BLK, S_KQ, S_QB, S_NT, S_T0, S_T1, S_T2 = 54, 55, 56, 57, 58, 59, 60, 61
S_DOFF, S_OOFF, S_M0A, S_M0B, S_CNT, S_XW, S_XR, S_OUTOFF, S_CTR, S_SPIN = 62, 63, 64, 65, 66, 67, 68, 69, 70, 71
V_L16 = 8
V_WD = 10
V_WA = 16
V_OUT = 24
V_OF = 64
V_T = 104
A_ACC = 0
A_F = 160
RING = 10
UNIT = 20480
XBASE = 64 << 20
FBASE = 52 << 20
POL = ['', ' nt', ' sc0', ' sc1', ' sc0 sc1', ' sc0 nt', ' sc1 nt', ' sc0 sc1 nt']

class K2:
    def __init__(self, a, opt):
        self.a = a; self.opt = opt; self.paths = {}
        self.NU = opt.get('NU', 4); self.dq = []
        self.OR = opt.get("OR", 8); self.NS = opt.get("NS", 4)
        self.launch = f"; @launch kernel=oproj_kernel grid=(256,1,1) block=(256,1,1) lds={self.NS*UNIT}"
        self.kd = gen_k1.KD.format(name="oproj_kernel", vgpr=512, sgpr=96, acc=256)

    def slot(self, n): return A_F + 4 * (n % RING)
    def oreg(self, ks, t): return V_OF + (ks % self.OR) * 8 + t * 4

    def setup(self):
        a = self.a
        a.e("s_cmp_ge_u32 s2, 256")
        a.e("s_cbranch_scc1 K2_END")
        a.e("s_load_dwordx2 s[32:33], s[0:1], 32")
        a.e("s_load_dwordx2 s[34:35], s[0:1], 72")
        a.e("s_load_dwordx4 s[36:39], s[0:1], 80")
        a.e("s_load_dwordx2 s[40:41], s[0:1], 96")
        a.e("v_and_b32 v1, 63, v0")
        a.e("v_lshrrev_b32 v2, 6, v0")
        a.e(f"v_lshlrev_b32 v{V_L16}, 4, v1")
        a.e(f"v_readfirstlane_b32 s{S_WAVE}, v2")
        a.e(f"s_bfe_u32 s{S_BLK}, s2, 0x10002")
        a.e(f"s_and_b32 s{S_KQ}, s2, 3")
        a.e(f"s_lshr_b32 s{S_QB}, s2, 5")
        a.e(f"s_bfe_u32 s{S_NT}, s2, 0x20003")
        a.e(f"s_mul_i32 s{S_T0}, s{S_WAVE}, 320")
        for i in range(5):
            a.e(f"v_add_u32 v3, s{S_T0}, v1")
            if i: a.e(f"v_add_u32 v3, {64*i}, v3")
            a.e("v_mul_u32_u24 v4, 3277, v3")
            a.e("v_lshrrev_b32 v4, 16, v4")
            a.e("v_mul_u32_u24 v5, 960, v4")
            a.e("v_lshl_add_u32 v5, v3, 4, v5")
            a.e(f"v_subrev_u32 v{V_WD+i}, {1024*i if i < 4 else 0}, v5")
        a.e("v_lshrrev_b32 v3, 5, v1")
        a.e("v_bfe_u32 v4, v1, 2, 2")
        a.e("v_lshl_add_u32 v4, v3, 3, v4")
        a.e("v_mul_u32_u24 v4, 320, v4")
        a.e("v_bfe_u32 v5, v1, 4, 1")
        a.e("v_bfe_u32 v6, v1, 1, 1")
        a.e("v_lshl_or_b32 v5, v5, 1, v6")
        a.e("v_mul_u32_u24 v5, 80, v5")
        a.e("v_add_u32 v4, v4, v5")
        a.e("v_and_b32 v5, 1, v1")
        a.e("v_lshl_add_u32 v4, v5, 3, v4")
        for s in range(self.NS):
            a.e(f"v_add_u32 v{V_WA+s}, {s*UNIT}, v4")
        a.e("v_and_b32 v5, 31, v1")
        a.e("v_mul_u32_u24 v5, 2560, v5")
        a.e(f"v_lshl_add_u32 v{V_OUT}, v3, 3, v5")
        a.e("s_waitcnt lgkmcnt(0)")
        a.e(f"s_cmp_eq_u32 s{S_BLK}, 0")
        a.e(f"s_cselect_b32 s{S_WO}, s32, s34")
        a.e(f"s_cselect_b32 s{S_WO+1}, s33, s35")
        a.e(f"s_mul_i32 s{S_T0}, s{S_KQ}, {1536*1280}")
        a.e(f"s_add_u32 s{S_WO}, s{S_WO}, s{S_T0}")
        a.e(f"s_addc_u32 s{S_WO+1}, s{S_WO+1}, 0")
        a.e(f"s_mov_b32 s{S_WO+2}, {1536*1280}")
        a.e(f"s_mov_b32 s{S_WO+3}, 0x00020000")
        a.e(f"s_mul_i32 s{S_T0}, s{S_BLK}, 25165824")
        a.e(f"s_lshl_b32 s{S_T1}, s{S_QB}, 3")
        a.e(f"s_lshl_b32 s{S_T2}, s{S_WAVE}, 1")
        a.e(f"s_add_u32 s{S_T1}, s{S_T1}, s{S_T2}")
        a.e(f"s_mul_i32 s{S_T1}, s{S_T1}, 393216")
        a.e(f"s_add_u32 s{S_T0}, s{S_T0}, s{S_T1}")
        a.e(f"s_mul_i32 s{S_T1}, s{S_KQ}, 98304")
        a.e(f"s_add_u32 s{S_T0}, s{S_T0}, s{S_T1}")
        a.e(f"s_add_u32 s{S_O0}, s40, s{S_T0}")
        a.e(f"s_addc_u32 s{S_O0+1}, s41, 0")
        a.e(f"s_mov_b32 s{S_O0+2}, 98304")
        a.e(f"s_mov_b32 s{S_O0+3}, 0x00020000")
        a.e(f"s_add_u32 s{S_O1}, s{S_O0}, 393216")
        a.e(f"s_addc_u32 s{S_O1+1}, s{S_O0+1}, 0")
        a.e(f"s_mov_b32 s{S_O1+2}, 98304")
        a.e(f"s_mov_b32 s{S_O1+3}, 0x00020000")
        a.e(f"s_mov_b32 s{S_WS}, s40"); a.e(f"s_mov_b32 s{S_WS+1}, s41")
        a.e(f"s_mov_b32 s{S_WS+2}, 439353344"); a.e(f"s_mov_b32 s{S_WS+3}, 0x00020000")
        a.e(f"s_mov_b32 s{S_OUT}, s36"); a.e(f"s_mov_b32 s{S_OUT+1}, s37")
        a.e(f"s_mov_b32 s{S_OUT+2}, {8*256*1280*2}"); a.e(f"s_mov_b32 s{S_OUT+3}, 0x00020000")
        a.e(f"s_mov_b32 s{S_DBG}, s38"); a.e(f"s_mov_b32 s{S_DBG+1}, s39")
        a.e(f"s_mov_b32 s{S_DBG+2}, 256"); a.e(f"s_mov_b32 s{S_DBG+3}, 0x00020000")
        a.e(f"s_mul_i32 s{S_DOFF}, s{S_NT}, 320")
        a.e(f"s_mov_b32 s{S_OOFF}, 0")
        a.e(f"s_mul_i32 s{S_M0A}, s{S_WAVE}, 5120")
        if self.opt.get("rot"):
            a.e(f"s_mul_i32 s{S_T0}, s{S_NT}, {self.opt.get('rn', 2)}")
            a.e(f"s_mul_i32 s{S_T1}, s{S_QB}, {self.opt.get('rq', 1)}")
            a.e(f"s_add_u32 s{S_T0}, s{S_T0}, s{S_T1}")
            a.e(f"s_lshl_b32 s{S_OOFF}, s{S_T0}, 12")
            a.e(f"s_mul_i32 s{S_T0}, s{S_T0}, 81920")
            a.e(f"s_add_u32 s{S_M0B}, s{S_DOFF}, s{S_T0}")
        a.e(f"s_lshl_b32 s{S_T0}, s{S_BLK}, 5")
        a.e(f"s_lshr_b32 s{S_T1}, s2, 3")
        a.e(f"s_add_u32 s{S_T0}, s{S_T0}, s{S_T1}")
        a.e(f"s_lshl_b32 s{S_CTR}, s{S_T0}, 8")
        a.e(f"s_lshl_b32 s{S_T1}, s{S_WAVE}, 2")
        a.e(f"s_add_u32 s{S_CTR}, s{S_CTR}, s{S_T1}")
        a.e(f"s_add_u32 s{S_CTR}, s{S_CTR}, {FBASE}")
        a.e(f"s_mul_i32 s{S_T0}, s{S_T0}, {16*20480}")
        a.e(f"s_mul_i32 s{S_T1}, s{S_WAVE}, 5120")
        a.e(f"s_add_u32 s{S_T0}, s{S_T0}, s{S_T1}")
        a.e(f"s_add_u32 s{S_XW}, s{S_T0}, {XBASE}")
        a.e(f"s_lshl_b32 s{S_T0}, s{S_QB}, 2")
        a.e(f"s_add_u32 s{S_T0}, s{S_T0}, s{S_WAVE}")
        a.e(f"s_mul_i32 s{S_OUTOFF}, s{S_T0}, {64*2560}")
        a.e(f"s_mul_i32 s{S_T0}, s{S_BLK}, 1280")
        a.e(f"s_add_u32 s{S_OUTOFF}, s{S_OUTOFF}, s{S_T0}")
        a.e(f"s_add_u32 s{S_OUTOFF}, s{S_OUTOFF}, s{S_DOFF}")
        a.e(f"s_mul_i32 s{S_T0}, s{S_KQ}, 80")
        a.e(f"s_add_u32 s{S_OUTOFF}, s{S_OUTOFF}, s{S_T0}")
        if self.opt.get("rot"):
            a.e(f"s_mov_b32 s{S_DOFF}, s{S_M0B}")

    def stamp(self, i):
        if not self.opt.get("stamp2"): return
        a = self.a
        a.e("s_memrealtime s[76:77]" if self.opt.get("stamp2") == 1 else "s_memtime s[76:77]")
        a.e("s_waitcnt lgkmcnt(0)"); a.lg = []
        a.e(f"s_mov_b32 s{80+i}, s76")

    def stamp_store(self):
        if not self.opt.get("stamp2"): return
        a = self.a
        a.e(f"s_lshl_b32 s{S_T0}, s2, 8")
        a.e(f"s_lshl_b32 s{S_T1}, s{S_WAVE}, 6")
        a.e(f"s_add_u32 s{S_T0}, s{S_T0}, s{S_T1}")
        a.e(f"s_add_u32 s{S_T0}, s{S_T0}, {60<<20}")
        a.e("v_mov_b32 v1, 0")
        for i in range(16):
            a.e(f"v_mov_b32 v2, s{80+i}")
            a.e(f"buffer_store_dword v2, v1, s[{S_WS}:{S_WS+3}], s{S_T0} offen offset:{4*i}")
            a.e("s_waitcnt vmcnt(0)")

    def dma_items(self, u):
        sl = (u % self.NS) * UNIT
        nt = POL[self.opt.get('ntw', 0)]
        o = [f"s_add_u32 m0, s{S_M0A}, {sl}", "s_nop 0"]
        for i in range(4):
            o.append(("VM", f"buffer_load_dwordx4 v{V_WD+i}, s[{S_WO}:{S_WO+3}], s{S_DOFF} offen offset:{1024*i}{nt} lds", ("W", u % self.NS)))
        o += [f"s_add_u32 m0, s{S_M0A}, {sl + 4096}", "s_nop 0"]
        o.append(("VM", f"buffer_load_dwordx4 v{V_WD+4}, s[{S_WO}:{S_WO+3}], s{S_DOFF} offen{nt} lds", ("W", u % self.NS)))
        o.append(f"s_add_u32 s{S_DOFF}, s{S_DOFF}, {64*1280}")
        return o

    def emit(self, it):
        if isinstance(it, tuple): self.a.vmem(it[1], it[2])
        else: self.a.e(it)

    def dma(self, u):
        for it in self.dma_items(u): self.emit(it)

    def oadv(self):
        a = self.a
        a.e(f"s_add_u32 s{S_OOFF}, s{S_OOFF}, 4096")
        if self.opt.get("rot"):
            a.e(f"s_cmp_ge_u32 s{S_OOFF}, 98304")
            a.e(f"s_cselect_b32 s{S_OOFF}, 0, s{S_OOFF}")

    def oload(self, ks, t):
        srd = S_O0 if t == 0 else S_O1
        self.a.vmem(f"buffer_load_dwordx4 {vr(self.oreg(ks,t),4)}, v{V_L16}, s[{srd}:{srd+3}], s{S_OOFF} offen offset:{(ks&3)*1024}{POL[self.opt.get('nto', 0)]}", ("O", ks % self.OR, t))

    def wread(self, g, i):
        u, r = divmod(g, 20); s, n5 = divmod(r, 5)
        self.a.ds(f"ds_read_b64_tr_b16 {ar(self.slot(g)+2*i,2)}, v{V_WA+(u%self.NS)} offset:{s*5120 + i*1280 + n5*16}", ("wf", g % (20*self.NU)))

    def body(self, first=False):
        a = self.a
        D = self.opt.get("D2", 5)
        G = self.opt.get("G2", 2)
        NT = 20 * self.NU
        for g in range(NT):
            u, r = divmod(g, 20); s, n5 = divmod(r, 5)
            ks = 4 * u + s
            if n5 == 0:
                a.wait_vm([("O", ks % self.OR, 0), ("O", ks % self.OR, 1)])
            a.wait_lg(("wf", (g + (G - 1 - g % G)) % NT))
            for t in range(2):
                acc = ar(A_ACC + (t * 5 + n5) * 16, 16)
                cin = "0" if (first and ks == 0) else acc
                a.e(f"v_mfma_f32_32x32x16_bf16 {acc}, {ar(self.slot(g),4)}, {vr(self.oreg(ks,t),4)}, {cin}")
                self.wread(g + D, t)
                if t == 0 and n5 in (1, 3):
                    kn = ks - 1 + self.OR
                    if n5 == 1 and (kn & 3) == 0: self.oadv()
                    self.oload(kn, n5 >> 1)
                elif t == 0 and n5 in (0, 2, 4):
                    while self.dq:
                        it = self.dq.pop(0); self.emit(it)
                        if isinstance(it, tuple): break
            if r == 20 - D - 1:
                assert not [x for x in self.dq if isinstance(x, tuple)]
                for it in self.dq: self.emit(it)
                a.wait_vm([("W", (u + 1) % self.NS)])
                a.e("s_barrier")
                self.dq = self.dma_items(u + self.NS - 1)

    def build(self, name):
        a = self.a
        D = self.opt.get("D2", 5)
        a.raw(f".globl {name}\n.p2align 8\n.type {name},@function")
        a.label(name)
        self.setup()
        i0 = len(a.lines)
        self.stamp(0)
        for u in range(self.NS - 1):
            self.dma(u)
            if 4 * u < self.OR - 1:
                if u: self.oadv()
                for ks in range(4 * u, min(4 * u + 4, self.OR - 1)):
                    for t in range(2): self.oload(ks, t)
        a.wait_vm([("W", 0)])
        a.e("s_barrier")
        self.stamp(1)
        for g in range(D):
            self.wread(g, 0); self.wread(g, 1)
        self.body(first=True)
        a.e(f"s_mov_b32 s{S_CNT}, {24 // self.NU - 1}")
        a.raw(".p2align 3")
        a.label("K2_LOOP")
        l0 = len(a.lines)
        self.body()
        t1 = a.lines[l0:]
        import copy
        b = Asm(); b.lg = list(a.lg); b.vm = list(a.vm)
        sa = self.a; self.a = b; dq = list(self.dq); self.body(); self.a = sa; self.dq = dq
        assert b.lines == t1, "K2 loop not steady"
        a.e(f"s_sub_u32 s{S_CNT}, s{S_CNT}, 1")
        a.e(f"s_cmp_lg_u32 s{S_CNT}, 0")
        a.e("s_cbranch_scc1 K2_LOOP")
        l1 = len(a.lines)
        if self.opt.get("k2nocomp"):
            a.lines[i0:] = [l for l in a.lines[i0:] if not (l.strip().startswith("v_mfma") or l.strip().startswith("ds_read"))]
        if self.opt.get("k2noo"):
            a.lines[i0:] = [l for l in a.lines[i0:] if not (l.strip().startswith("buffer_load") and " lds" not in l)]
        if self.opt.get("k2now"):
            a.lines[i0:] = [l for l in a.lines[i0:] if not (l.strip().startswith("buffer_load") and " lds" in l)]
        l1 = len(a.lines); l0 = a.lines.index("K2_LOOP:") + 1
        a.e("s_waitcnt vmcnt(0) lgkmcnt(0)"); a.vm = []; a.lg = []
        a.e("s_nop 15")
        self.stamp(2)
        a.e("v_mov_b32 v1, 0")
        a.e("v_mov_b32 v2, 1")
        for kq in range(4):
            if kq < 3:
                a.e(f"s_cmp_lg_u32 s{S_KQ}, {kq}")
                a.e(f"s_cbranch_scc1 K2_X{kq+1}")
            for d in range(1, 4):
                g = (kq + d) & 3
                tb = V_T + 40 + (d - 1) * 20
                for tl in range(10):
                    for m in range(4):
                        a.e(f"v_accvgpr_read_b32 v{4+m}, a{A_ACC+tl*16+4*g+m}")
                    a.e(f"v_cvt_pk_bf16_f32 v{tb+2*tl}, v4, v5")
                    a.e(f"v_cvt_pk_bf16_f32 v{tb+2*tl+1}, v6, v7")
                    if tl % 2 == 1:
                        k = tl // 2
                        if k in (0, 4): a.e(f"s_add_u32 s{S_T0}, s{S_XW}, {(g*4+kq)*20480 + (4096 if k == 4 else 0)}")
                        a.e(f"buffer_store_dwordx4 {vr(tb+4*k,4)}, v{V_L16}, s[{S_WS}:{S_WS+3}], s{S_T0} offen offset:{(k&3)*1024} sc0 sc1")
            for tl in range(10):
                for m in range(4):
                    a.e(f"v_accvgpr_read_b32 v{V_T+tl*4+m}, a{A_ACC+tl*16+4*kq+m}")
            a.e("s_mov_b64 exec, 1")
            for d in range(1, 4):
                g = (kq + d) & 3
                a.e(f"s_waitcnt vmcnt({10 - 5*(d-1) + (d-1)})")
                a.e(f"buffer_store_dword v2, v1, s[{S_WS}:{S_WS+3}], s{S_CTR} offen offset:{(g*4+kq)*16} sc0 sc1")
            a.e("s_mov_b64 exec, -1")
            self.stamp(3)
            for d in range(1, 4):
                src = (kq - d) & 3
                a.e(f"s_mov_b32 s{S_SPIN}, 0")
                a.label(f"K2_POLL{kq}_{d}")
                a.e(f"buffer_load_dword v3, v1, s[{S_WS}:{S_WS+3}], s{S_CTR} offen offset:{(kq*4+src)*16} sc0 sc1")
                a.e("s_waitcnt vmcnt(0)")
                a.e("v_readfirstlane_b32 s46, v3")
                a.e(f"s_add_u32 s{S_SPIN}, s{S_SPIN}, 1")
                a.e("s_cmp_eq_u32 s46, 1")
                a.e(f"s_cbranch_scc1 K2_GOT{kq}_{d}")
                a.e(f"s_cmp_lt_u32 s{S_SPIN}, 2000000")
                a.e(f"s_cbranch_scc1 K2_POLL{kq}_{d}")
                a.label(f"K2_GOT{kq}_{d}")
                tb = V_OF + (d - 1) * 20 if d < 3 else V_T + 100
                for k in range(5):
                    if k in (0, 4): a.e(f"s_add_u32 s{S_T0}, s{S_XW}, {(kq*4+src)*20480 + (4096 if k == 4 else 0)}")
                    a.e(f"buffer_load_dwordx4 {vr(tb+4*k,4)}, v{V_L16}, s[{S_WS}:{S_WS+3}], s{S_T0} offen offset:{(k&3)*1024} sc0 sc1")
            if kq < 3:
                a.e("s_branch K2_SUM")
                a.label(f"K2_X{kq+1}")
        a.label("K2_SUM")
        self.stamp(4)
        a.e("s_mov_b32 s46, 0xffff0000")
        for d in range(1, 4):
            if d == 3: a.e("s_waitcnt vmcnt(0)")
            tb = V_OF + (d - 1) * 20 if d < 3 else V_T + 100
            for r in range(20):
                a.e(f"v_lshlrev_b32 v4, 16, v{tb+r}")
                a.e(f"v_and_b32 v5, s46, v{tb+r}")
                a.e(f"v_add_f32 v{V_T+2*r}, v{V_T+2*r}, v4")
                a.e(f"v_add_f32 v{V_T+2*r+1}, v{V_T+2*r+1}, v5")
        for tl in range(10):
            t, n5 = divmod(tl, 5)
            a.e(f"v_cvt_pk_bf16_f32 v{V_T+tl*4}, v{V_T+tl*4}, v{V_T+tl*4+1}")
            a.e(f"v_cvt_pk_bf16_f32 v{V_T+tl*4+1}, v{V_T+tl*4+2}, v{V_T+tl*4+3}")
            if n5 == 0:
                a.e(f"s_add_u32 s{S_T0}, s{S_OUTOFF}, {t*32*2560}")
            a.e(f"buffer_store_dwordx2 {vr(V_T+tl*4,2)}, v{V_OUT}, s[{S_OUT}:{S_OUT+3}], s{S_T0} offen offset:{n5*16}")
        if self.opt.get("stamp2"):
            a.e("s_waitcnt vmcnt(0)")
        self.stamp(5)
        self.stamp_store()
        a.label("K2_END")
        a.e("s_endpgm")
        self.paths["k2"] = a.lines[i0:l1] + a.lines[l0:]
```

```python
import re

class Asm:
    def __init__(self):
        self.lines = []
        self.lg = []
        self.vm = []
    def raw(self, s):
        self.lines.append(s)
    def e(self, s):
        self.lines.append("  " + s)
    def label(self, l):
        self.lines.append(l + ":")
    def c(self, s):
        self.lines.append("  ; " + s)
    def ds(self, s, tag):
        self.e(s); self.lg.append(tag)
    def lg_need(self, tag):
        idx = [i for i, t in enumerate(self.lg) if t == tag]
        if not idx: return None
        return len(self.lg) - 1 - idx[-1]
    def wait_lg(self, tag):
        n = self.lg_need(tag)
        if n is None: return False
        assert n <= 15, n
        self.e(f"s_waitcnt lgkmcnt({n})")
        self.lg = self.lg[len(self.lg) - n:] if n else []
        return True
    def wait_lg_all(self):
        self.e("s_waitcnt lgkmcnt(0)"); self.lg = []
    def vmem(self, s, tag):
        self.e(s); self.vm.append(tag)
    def vm_need(self, tags):
        if not isinstance(tags, (list, tuple, set)): tags = [tags]
        idx = [i for i, t in enumerate(self.vm) if t in tags]
        if not idx: return None
        return len(self.vm) - 1 - idx[-1]
    def wait_vm(self, tags):
        n = self.vm_need(tags)
        if n is None: return False
        assert n <= 63, n
        self.e(f"s_waitcnt vmcnt({n})")
        self.vm = self.vm[len(self.vm) - n:] if n else []
        return True
    def wait_vm_all(self):
        self.e("s_waitcnt vmcnt(0)"); self.vm = []
    def text(self):
        return "\n".join(self.lines) + "\n"

def vr(b, n=1):
    return f"v{b}" if n == 1 else f"v[{b}:{b+n-1}]"
def ar(b, n=1):
    return f"a{b}" if n == 1 else f"a[{b}:{b+n-1}]"
def sr(b, n=1):
    return f"s{b}" if n == 1 else f"s[{b}:{b+n-1}]"

_REG = re.compile(r"\b([va])(?:(\d+)|\[(\d+):(\d+)\])")
TRANS = ("v_exp_f32", "v_log_f32", "v_rcp_f32", "v_rsq_f32", "v_sqrt_f32", "v_sin_f32", "v_cos_f32")

def _regs(tok):
    out = set()
    for m in _REG.finditer(tok):
        k = m.group(1)
        if m.group(2) is not None:
            out.add((k, int(m.group(2))))
        else:
            for i in range(int(m.group(3)), int(m.group(4)) + 1): out.add((k, i))
    return out

def _split(ins):
    ins = ins.split(";")[0].strip()
    if not ins: return None
    parts = ins.split(None, 1)
    mn = parts[0]
    ops = []
    if len(parts) > 1:
        depth = 0; cur = ""
        for ch in parts[1]:
            if ch == "[": depth += 1
            if ch == "]": depth -= 1
            if ch == "," and depth == 0:
                ops.append(cur.strip()); cur = ""
            else: cur += ch
        ops.append(cur.strip())
    return mn, ops

class I:
    pass

def decode(ins):
    sp = _split(ins)
    if sp is None: return None
    mn, ops = sp
    i = I(); i.text = ins.strip(); i.mn = mn
    i.wr = set(); i.rd = set(); i.kind = "other"; i.ws = 1
    i.srcC = set(); i.srcAB = set()
    if mn == "s_nop":
        i.ws = int(ops[0], 0) + 1
    elif mn.startswith("v_mfma"):
        i.kind = "mfma"; i.wr = _regs(ops[0]); i.srcAB = _regs(ops[1]) | _regs(ops[2]); i.srcC = _regs(ops[3])
        i.rd = i.srcAB | i.srcC
        i.passes = 8 if "32x32x16" in mn else 4
    elif mn.startswith("v_permlane"):
        i.kind = "perm"; i.wr = _regs(ops[0]) | _regs(ops[1]); i.rd = set(i.wr)
    elif mn.startswith("v_cmp"):
        i.kind = "valu"; i.rd = set().union(*[_regs(o) for o in ops[1:]])
    elif mn in ("v_readfirstlane_b32", "v_readlane_b32"):
        i.kind = "rdlane"; i.rd = _regs(ops[1])
    elif mn.startswith("v_"):
        i.kind = "trans" if mn.replace("_e32", "").replace("_e64", "") in TRANS else "valu"
        i.wr = _regs(ops[0]); i.rd = set().union(*[_regs(o) for o in ops[1:]]) if len(ops) > 1 else set()
        if mn.startswith("v_fmac") or mn.startswith("v_pk_fmac"): i.rd |= i.wr
    elif mn.startswith("ds_read") :
        i.kind = "mem"; i.wr = _regs(ops[0]); i.rd = _regs(ops[1].split()[0])
    elif mn.startswith("ds_write"):
        i.kind = "mem"; i.rd = set().union(*[_regs(o.split()[0]) for o in ops])
    elif mn.startswith("buffer_load") or mn.startswith("global_load"):
        i.kind = "mem"
        if " lds" in ins.split(";")[0] or "_lds_" in mn:
            i.rd = _regs(ops[0])
        else:
            i.wr = _regs(ops[0]); i.rd = _regs(ops[1])
    elif mn.startswith("buffer_store") or mn.startswith("global_store"):
        i.kind = "store"; i.rd = _regs(ops[0]) | _regs(ops[1])
        i.data = _regs(ops[0]) if mn.startswith("buffer") else _regs(ops[1])
        i.wide = ("x4" in mn or "x3" in mn)
    return i

def check_linear(instrs, what=""):
    dec = [d for d in (decode(x) for x in instrs if not x.rstrip().endswith(":") and not x.strip().startswith(".") and not x.strip().startswith(";")) if d]
    probs = []
    pos = []; p = 0
    for d in dec:
        pos.append(p); p += d.ws
    for k, d in enumerate(dec):
        j = k - 1
        while j >= 0:
            pr = dec[j]
            dist = pos[k] - pos[j] - pr.ws
            if dist >= 24: break
            def bad(need, why):
                if dist < need:
                    probs.append(f"{what}: {why}: need {need} have {dist}: [{pr.text}] -> [{d.text}]")
            if pr.kind == "mfma":
                n = 12 if pr.passes == 8 else 8
                if d.kind == "mfma":
                    if pr.wr & d.srcAB: bad(n, "mfma D->A/B")
                    if pr.wr & d.srcC and pr.wr != d.srcC: bad(n - 2, "mfma D->C overlap")
                    if pr.wr & d.wr and not (pr.wr == d.srcC == d.wr) and not (pr.wr & d.srcC): bad(n, "mfma D->D WAW (conservative)")
                elif d.kind in ("valu", "trans", "perm", "rdlane", "mem", "store"):
                    if pr.wr & (d.rd | d.wr): bad(n, "mfma D->use")
                    if d.kind in ("valu", "trans", "perm") and (pr.srcC & d.wr): bad(7 if pr.passes == 8 else 3, "mfma C WAR")
            if pr.kind in ("valu", "trans", "perm"):
                if d.kind == "mfma" and (pr.wr & d.rd): bad(2, "valu->mfma")
                if d.kind == "perm" and (pr.wr & d.rd): bad(2, "valu->permlane")
                if d.kind == "rdlane" and (pr.wr & d.rd): bad(1, "valu->readlane")
                if pr.kind == "trans" and d.kind in ("valu", "perm") and (pr.wr & d.rd): bad(1, "trans->valu")
            if pr.kind == "store" and pr.wide and d.kind in ("valu", "trans", "perm") and (pr.data & d.wr): bad(2, "store data WAR")
            j -= 1
    return probs


def claim_slot(a, pfx, s_dbg_lo, s_wave, s_out, srd, tmp0, tmp1, lds_off=0):
    a.e(f"s_mov_b32 s{srd}, s{s_dbg_lo}")
    a.e(f"s_mov_b32 s{srd+1}, s{s_dbg_lo+1}")
    a.e(f"s_mov_b32 s{srd+2}, 256")
    a.e(f"s_mov_b32 s{srd+3}, 0x00020000")
    a.e(f"v_mov_b32 v3, {lds_off}")
    a.e(f"s_cmp_lg_u32 s{s_wave}, 0")
    a.e(f"s_cbranch_scc1 {pfx}_CLAIMED")
    a.e(f"s_getreg_b32 s{tmp0}, hwreg(HW_REG_XCC_ID)")
    a.e(f"s_and_b32 s{tmp0}, s{tmp0}, 7")
    a.e("s_mov_b64 exec, 1")
    a.e("v_mov_b32 v1, 0")
    a.e(f"s_mov_b32 s{s_out}, 0")
    a.label(f"{pfx}_TRY")
    a.e("v_mov_b32 v2, 1")
    a.e(f"s_lshl_b32 s{tmp1}, s{tmp0}, 2")
    a.e(f"buffer_atomic_add v2, v1, s[{srd}:{srd+3}], s{tmp1} offen sc0 sc1")
    a.e("s_waitcnt vmcnt(0)")
    a.e(f"v_readfirstlane_b32 s{tmp1}, v2")
    a.e("s_nop 3")
    a.e(f"s_cmp_lt_u32 s{tmp1}, 32")
    a.e(f"s_cbranch_scc1 {pfx}_GOT")
    a.e(f"s_add_u32 s{tmp0}, s{tmp0}, 1")
    a.e(f"s_and_b32 s{tmp0}, s{tmp0}, 7")
    a.e(f"s_add_u32 s{s_out}, s{s_out}, 1")
    a.e(f"s_cmp_lt_u32 s{s_out}, 8")
    a.e(f"s_cbranch_scc1 {pfx}_TRY")
    a.label(f"{pfx}_GOT")
    a.e(f"s_and_b32 s{tmp1}, s{tmp1}, 31")
    a.e(f"s_lshl_b32 s{tmp1}, s{tmp1}, 3")
    a.e(f"s_or_b32 s{tmp1}, s{tmp1}, s{tmp0}")
    a.e(f"v_mov_b32 v2, s{tmp1}")
    a.e("ds_write_b32 v3, v2")
    a.e("s_waitcnt lgkmcnt(0)")
    a.e("s_mov_b64 exec, -1")
    a.label(f"{pfx}_CLAIMED")
    a.e("s_barrier")
    a.e("ds_read_b32 v2, v3")
    a.e("s_waitcnt lgkmcnt(0)")
    a.e(f"v_readfirstlane_b32 s{s_out}, v2")
    a.e("s_nop 3")
```

```python
from asmlib import *
import gen_k1

S_WO, S_O0, S_O1, S_WS, S_OUT, S_DBG = 8, 12, 16, 20, 24, 28
S_WAVE, S_BLK, S_KQ, S_QB, S_NT, S_T0, S_T1, S_T2 = 54, 55, 56, 57, 58, 59, 60, 61
S_DOFF, S_OOFF, S_M0A, S_M0B, S_CNT, S_XW, S_XR, S_OUTOFF, S_CTR, S_SPIN = 62, 63, 64, 65, 66, 67, 68, 69, 70, 71
V_L16 = 8
V_WD = 10
V_WA = 16
V_OUT = 24
V_OF = 64
V_T = 104
A_ACC = 0
A_F = 160
RING = 10
UNIT = 20480
XBASE = 64 << 20
FBASE = 52 << 20
POL = ['', ' nt', ' sc0', ' sc1', ' sc0 sc1', ' sc0 nt', ' sc1 nt', ' sc0 sc1 nt']

class K2:
    def __init__(self, a, opt):
        self.a = a; self.opt = opt; self.paths = {}
        self.NU = opt.get('NU', 4); self.dq = []
        self.OR = opt.get("OR", 8); self.NS = opt.get("NS", 4)
        self.launch = f"; @launch kernel=oproj_kernel grid=(256,1,1) block=(256,1,1) lds={self.NS*UNIT}"
        self.kd = gen_k1.KD.format(name="oproj_kernel", vgpr=512, sgpr=96, acc=256)

    def slot(self, n): return A_F + 4 * (n % RING)
    def oreg(self, ks, t): return V_OF + (ks % self.OR) * 8 + t * 4

    def setup(self):
        a = self.a
        a.e("s_cmp_ge_u32 s2, 256")
        a.e("s_cbranch_scc1 K2_END")
        a.e("s_load_dwordx2 s[32:33], s[0:1], 32")
        a.e("s_load_dwordx2 s[34:35], s[0:1], 72")
        a.e("s_load_dwordx4 s[36:39], s[0:1], 80")
        a.e("s_load_dwordx2 s[40:41], s[0:1], 96")
        a.e("v_and_b32 v1, 63, v0")
        a.e("v_lshrrev_b32 v2, 6, v0")
        a.e(f"v_lshlrev_b32 v{V_L16}, 4, v1")
        a.e(f"v_readfirstlane_b32 s{S_WAVE}, v2")
        a.e(f"s_mul_i32 s{S_T0}, s{S_WAVE}, 320")
        for i in range(5):
            a.e(f"v_add_u32 v3, s{S_T0}, v1")
            if i: a.e(f"v_add_u32 v3, {64*i}, v3")
            a.e("v_mul_u32_u24 v4, 3277, v3")
            a.e("v_lshrrev_b32 v4, 16, v4")
            a.e("v_mul_u32_u24 v5, 960, v4")
            a.e("v_lshl_add_u32 v5, v3, 4, v5")
            a.e(f"v_subrev_u32 v{V_WD+i}, {1024*i if i < 4 else 0}, v5")
        a.e("v_lshrrev_b32 v3, 5, v1")
        a.e("v_bfe_u32 v4, v1, 2, 2")
        a.e("v_lshl_add_u32 v4, v3, 3, v4")
        a.e("v_mul_u32_u24 v4, 320, v4")
        a.e("v_bfe_u32 v5, v1, 4, 1")
        a.e("v_bfe_u32 v6, v1, 1, 1")
        a.e("v_lshl_or_b32 v5, v5, 1, v6")
        a.e("v_mul_u32_u24 v5, 80, v5")
        a.e("v_add_u32 v4, v4, v5")
        a.e("v_and_b32 v5, 1, v1")
        a.e("v_lshl_add_u32 v4, v5, 3, v4")
        for s in range(self.NS):
            a.e(f"v_add_u32 v{V_WA+s}, {s*UNIT}, v4")
        a.e("v_and_b32 v5, 31, v1")
        a.e("v_mul_u32_u24 v5, 2560, v5")
        a.e(f"v_lshl_add_u32 v{V_OUT}, v3, 3, v5")
        a.e("s_waitcnt lgkmcnt(0)")
        if self.opt.get("xcc", 1):
            claim_slot(a, "K2", 38, S_WAVE, 2, S_DBG, S_T0, S_T1, lds_off=81916)
        a.e(f"s_bfe_u32 s{S_BLK}, s2, 0x10002")
        a.e(f"s_and_b32 s{S_KQ}, s2, 3")
        a.e(f"s_lshr_b32 s{S_QB}, s2, 5")
        a.e(f"s_bfe_u32 s{S_NT}, s2, 0x20003")
        a.e(f"s_cmp_eq_u32 s{S_BLK}, 0")
        a.e(f"s_cselect_b32 s{S_WO}, s32, s34")
        a.e(f"s_cselect_b32 s{S_WO+1}, s33, s35")
        a.e(f"s_mul_i32 s{S_T0}, s{S_KQ}, {1536*1280}")
        a.e(f"s_add_u32 s{S_WO}, s{S_WO}, s{S_T0}")
        a.e(f"s_addc_u32 s{S_WO+1}, s{S_WO+1}, 0")
        a.e(f"s_mov_b32 s{S_WO+2}, {1536*1280}")
        a.e(f"s_mov_b32 s{S_WO+3}, 0x00020000")
        a.e(f"s_mul_i32 s{S_T0}, s{S_BLK}, 25165824")
        a.e(f"s_lshl_b32 s{S_T1}, s{S_QB}, 3")
        a.e(f"s_lshl_b32 s{S_T2}, s{S_WAVE}, 1")
        a.e(f"s_add_u32 s{S_T1}, s{S_T1}, s{S_T2}")
        a.e(f"s_mul_i32 s{S_T1}, s{S_T1}, 393216")
        a.e(f"s_add_u32 s{S_T0}, s{S_T0}, s{S_T1}")
        a.e(f"s_mul_i32 s{S_T1}, s{S_KQ}, 98304")
        a.e(f"s_add_u32 s{S_T0}, s{S_T0}, s{S_T1}")
        a.e(f"s_add_u32 s{S_O0}, s40, s{S_T0}")
        a.e(f"s_addc_u32 s{S_O0+1}, s41, 0")
        a.e(f"s_mov_b32 s{S_O0+2}, 98304")
        a.e(f"s_mov_b32 s{S_O0+3}, 0x00020000")
        a.e(f"s_add_u32 s{S_O1}, s{S_O0}, 393216")
        a.e(f"s_addc_u32 s{S_O1+1}, s{S_O0+1}, 0")
        a.e(f"s_mov_b32 s{S_O1+2}, 98304")
        a.e(f"s_mov_b32 s{S_O1+3}, 0x00020000")
        a.e(f"s_mov_b32 s{S_WS}, s40"); a.e(f"s_mov_b32 s{S_WS+1}, s41")
        a.e(f"s_mov_b32 s{S_WS+2}, 439353344"); a.e(f"s_mov_b32 s{S_WS+3}, 0x00020000")
        a.e(f"s_mov_b32 s{S_OUT}, s36"); a.e(f"s_mov_b32 s{S_OUT+1}, s37")
        a.e(f"s_mov_b32 s{S_OUT+2}, {8*256*1280*2}"); a.e(f"s_mov_b32 s{S_OUT+3}, 0x00020000")
        a.e(f"s_mov_b32 s{S_DBG}, s38"); a.e(f"s_mov_b32 s{S_DBG+1}, s39")
        a.e(f"s_mov_b32 s{S_DBG+2}, 256"); a.e(f"s_mov_b32 s{S_DBG+3}, 0x00020000")
        a.e(f"s_mul_i32 s{S_DOFF}, s{S_NT}, 320")
        a.e(f"s_mov_b32 s{S_OOFF}, 0")
        a.e(f"s_mul_i32 s{S_M0A}, s{S_WAVE}, 5120")
        if self.opt.get("rot"):
            a.e(f"s_mul_i32 s{S_T0}, s{S_NT}, {self.opt.get('rn', 2)}")
            a.e(f"s_mul_i32 s{S_T1}, s{S_QB}, {self.opt.get('rq', 1)}")
            a.e(f"s_add_u32 s{S_T0}, s{S_T0}, s{S_T1}")
            a.e(f"s_lshl_b32 s{S_OOFF}, s{S_T0}, 12")
            a.e(f"s_mul_i32 s{S_T0}, s{S_T0}, 81920")
            a.e(f"s_add_u32 s{S_M0B}, s{S_DOFF}, s{S_T0}")
        a.e(f"s_lshl_b32 s{S_T0}, s{S_BLK}, 5")
        a.e(f"s_lshr_b32 s{S_T1}, s2, 3")
        a.e(f"s_add_u32 s{S_T0}, s{S_T0}, s{S_T1}")
        a.e(f"s_lshl_b32 s{S_CTR}, s{S_T0}, 8")
        a.e(f"s_lshl_b32 s{S_T1}, s{S_WAVE}, 2")
        a.e(f"s_add_u32 s{S_CTR}, s{S_CTR}, s{S_T1}")
        a.e(f"s_add_u32 s{S_CTR}, s{S_CTR}, {FBASE}")
        a.e(f"s_mul_i32 s{S_T0}, s{S_T0}, {16*20480}")
        a.e(f"s_mul_i32 s{S_T1}, s{S_WAVE}, 5120")
        a.e(f"s_add_u32 s{S_T0}, s{S_T0}, s{S_T1}")
        a.e(f"s_add_u32 s{S_XW}, s{S_T0}, {XBASE}")
        a.e(f"s_lshl_b32 s{S_T0}, s{S_QB}, 2")
        a.e(f"s_add_u32 s{S_T0}, s{S_T0}, s{S_WAVE}")
        a.e(f"s_mul_i32 s{S_OUTOFF}, s{S_T0}, {64*2560}")
        a.e(f"s_mul_i32 s{S_T0}, s{S_BLK}, 1280")
        a.e(f"s_add_u32 s{S_OUTOFF}, s{S_OUTOFF}, s{S_T0}")
        a.e(f"s_add_u32 s{S_OUTOFF}, s{S_OUTOFF}, s{S_DOFF}")
        a.e(f"s_mul_i32 s{S_T0}, s{S_KQ}, 80")
        a.e(f"s_add_u32 s{S_OUTOFF}, s{S_OUTOFF}, s{S_T0}")
        if self.opt.get("rot"):
            a.e(f"s_mov_b32 s{S_DOFF}, s{S_M0B}")

    def stamp(self, i):
        if not self.opt.get("stamp2"): return
        a = self.a
        a.e("s_memrealtime s[76:77]" if self.opt.get("stamp2") == 1 else "s_memtime s[76:77]")
        a.e("s_waitcnt lgkmcnt(0)"); a.lg = []
        a.e(f"s_mov_b32 s{80+i}, s76")

    def stamp_store(self):
        if not self.opt.get("stamp2"): return
        a = self.a
        a.e(f"s_lshl_b32 s{S_T0}, s2, 8")
        a.e(f"s_lshl_b32 s{S_T1}, s{S_WAVE}, 6")
        a.e(f"s_add_u32 s{S_T0}, s{S_T0}, s{S_T1}")
        a.e(f"s_add_u32 s{S_T0}, s{S_T0}, {60<<20}")
        a.e("v_mov_b32 v1, 0")
        for i in range(16):
            a.e(f"v_mov_b32 v2, s{80+i}")
            a.e(f"buffer_store_dword v2, v1, s[{S_WS}:{S_WS+3}], s{S_T0} offen offset:{4*i}")
            a.e("s_waitcnt vmcnt(0)")

    def dma_items(self, u):
        sl = (u % self.NS) * UNIT
        nt = POL[self.opt.get('ntw', 0)]
        o = [f"s_add_u32 m0, s{S_M0A}, {sl}", "s_nop 0"]
        for i in range(4):
            o.append(("VM", f"buffer_load_dwordx4 v{V_WD+i}, s[{S_WO}:{S_WO+3}], s{S_DOFF} offen offset:{1024*i}{nt} lds", ("W", u % self.NS)))
        o += [f"s_add_u32 m0, s{S_M0A}, {sl + 4096}", "s_nop 0"]
        o.append(("VM", f"buffer_load_dwordx4 v{V_WD+4}, s[{S_WO}:{S_WO+3}], s{S_DOFF} offen{nt} lds", ("W", u % self.NS)))
        o.append(f"s_add_u32 s{S_DOFF}, s{S_DOFF}, {64*1280}")
        return o

    def emit(self, it):
        if isinstance(it, tuple): self.a.vmem(it[1], it[2])
        else: self.a.e(it)

    def dma(self, u):
        for it in self.dma_items(u): self.emit(it)

    def oadv(self):
        a = self.a
        a.e(f"s_add_u32 s{S_OOFF}, s{S_OOFF}, 4096")
        if self.opt.get("rot"):
            a.e(f"s_cmp_ge_u32 s{S_OOFF}, 98304")
            a.e(f"s_cselect_b32 s{S_OOFF}, 0, s{S_OOFF}")

    def oload(self, ks, t):
        srd = S_O0 if t == 0 else S_O1
        self.a.vmem(f"buffer_load_dwordx4 {vr(self.oreg(ks,t),4)}, v{V_L16}, s[{srd}:{srd+3}], s{S_OOFF} offen offset:{(ks&3)*1024}{POL[self.opt.get('nto', 0)]}", ("O", ks % self.OR, t))

    def wread(self, g, i):
        u, r = divmod(g, 20); s, n5 = divmod(r, 5)
        self.a.ds(f"ds_read_b64_tr_b16 {ar(self.slot(g)+2*i,2)}, v{V_WA+(u%self.NS)} offset:{s*5120 + i*1280 + n5*16}", ("wf", g % (20*self.NU)))

    def body(self, first=False):
        a = self.a
        D = self.opt.get("D2", 5)
        G = self.opt.get("G2", 2)
        NT = 20 * self.NU
        for g in range(NT):
            u, r = divmod(g, 20); s, n5 = divmod(r, 5)
            ks = 4 * u + s
            if n5 == 0:
                a.wait_vm([("O", ks % self.OR, 0), ("O", ks % self.OR, 1)])
            a.wait_lg(("wf", (g + (G - 1 - g % G)) % NT))
            for t in range(2):
                acc = ar(A_ACC + (t * 5 + n5) * 16, 16)
                cin = "0" if (first and ks == 0) else acc
                a.e(f"v_mfma_f32_32x32x16_bf16 {acc}, {ar(self.slot(g),4)}, {vr(self.oreg(ks,t),4)}, {cin}")
                self.wread(g + D, t)
                if t == 0 and n5 in (1, 3):
                    kn = ks - 1 + self.OR
                    if n5 == 1 and (kn & 3) == 0: self.oadv()
                    self.oload(kn, n5 >> 1)
                elif t == 0 and n5 in (0, 2, 4):
                    while self.dq:
                        it = self.dq.pop(0); self.emit(it)
                        if isinstance(it, tuple): break
            if r == 20 - D - 1:
                assert not [x for x in self.dq if isinstance(x, tuple)]
                for it in self.dq: self.emit(it)
                a.wait_vm([("W", (u + 1) % self.NS)])
                a.e("s_barrier")
                self.dq = self.dma_items(u + self.NS - 1)

    def build(self, name):
        a = self.a
        D = self.opt.get("D2", 5)
        a.raw(f".globl {name}\n.p2align 8\n.type {name},@function")
        a.label(name)
        self.setup()
        i0 = len(a.lines)
        self.stamp(0)
        for u in range(self.NS - 1):
            self.dma(u)
            if 4 * u < self.OR - 1:
                if u: self.oadv()
                for ks in range(4 * u, min(4 * u + 4, self.OR - 1)):
                    for t in range(2): self.oload(ks, t)
        a.wait_vm([("W", 0)])
        a.e("s_barrier")
        self.stamp(1)
        for g in range(D):
            self.wread(g, 0); self.wread(g, 1)
        self.body(first=True)
        a.e(f"s_mov_b32 s{S_CNT}, {24 // self.NU - 1}")
        a.raw(".p2align 3")
        a.label("K2_LOOP")
        l0 = len(a.lines)
        self.body()
        t1 = a.lines[l0:]
        import copy
        b = Asm(); b.lg = list(a.lg); b.vm = list(a.vm)
        sa = self.a; self.a = b; dq = list(self.dq); self.body(); self.a = sa; self.dq = dq
        assert b.lines == t1, "K2 loop not steady"
        a.e(f"s_sub_u32 s{S_CNT}, s{S_CNT}, 1")
        a.e(f"s_cmp_lg_u32 s{S_CNT}, 0")
        a.e("s_cbranch_scc1 K2_LOOP")
        l1 = len(a.lines)
        if self.opt.get("k2nocomp"):
            a.lines[i0:] = [l for l in a.lines[i0:] if not (l.strip().startswith("v_mfma") or l.strip().startswith("ds_read"))]
        if self.opt.get("k2noo"):
            a.lines[i0:] = [l for l in a.lines[i0:] if not (l.strip().startswith("buffer_load") and " lds" not in l)]
        if self.opt.get("k2now"):
            a.lines[i0:] = [l for l in a.lines[i0:] if not (l.strip().startswith("buffer_load") and " lds" in l)]
        l1 = len(a.lines); l0 = a.lines.index("K2_LOOP:") + 1
        a.e("s_waitcnt vmcnt(0) lgkmcnt(0)"); a.vm = []; a.lg = []
        a.e("s_nop 15")
        self.stamp(2)
        a.e("v_mov_b32 v1, 0")
        a.e("v_mov_b32 v2, 1")
        for kq in range(4):
            if kq < 3:
                a.e(f"s_cmp_lg_u32 s{S_KQ}, {kq}")
                a.e(f"s_cbranch_scc1 K2_X{kq+1}")
            for d in range(1, 4):
                g = (kq + d) & 3
                tb = V_T + 40 + (d - 1) * 20
                for tl in range(10):
                    for m in range(4):
                        a.e(f"v_accvgpr_read_b32 v{4+m}, a{A_ACC+tl*16+4*g+m}")
                    a.e(f"v_cvt_pk_bf16_f32 v{tb+2*tl}, v4, v5")
                    a.e(f"v_cvt_pk_bf16_f32 v{tb+2*tl+1}, v6, v7")
                    if tl % 2 == 1:
                        k = tl // 2
                        if k in (0, 4): a.e(f"s_add_u32 s{S_T0}, s{S_XW}, {(g*4+kq)*20480 + (4096 if k == 4 else 0)}")
                        a.e(f"buffer_store_dwordx4 {vr(tb+4*k,4)}, v{V_L16}, s[{S_WS}:{S_WS+3}], s{S_T0} offen offset:{(k&3)*1024} sc0 sc1")
            for tl in range(10):
                for m in range(4):
                    a.e(f"v_accvgpr_read_b32 v{V_T+tl*4+m}, a{A_ACC+tl*16+4*kq+m}")
            a.e("s_mov_b64 exec, 1")
            for d in range(1, 4):
                g = (kq + d) & 3
                a.e(f"s_waitcnt vmcnt({10 - 5*(d-1) + (d-1)})")
                a.e(f"buffer_store_dword v2, v1, s[{S_WS}:{S_WS+3}], s{S_CTR} offen offset:{(g*4+kq)*16} sc0 sc1")
            a.e("s_mov_b64 exec, -1")
            self.stamp(3)
            for d in range(1, 4):
                src = (kq - d) & 3
                a.e(f"s_mov_b32 s{S_SPIN}, 0")
                a.label(f"K2_POLL{kq}_{d}")
                a.e(f"buffer_load_dword v3, v1, s[{S_WS}:{S_WS+3}], s{S_CTR} offen offset:{(kq*4+src)*16} sc0 sc1")
                a.e("s_waitcnt vmcnt(0)")
                a.e("v_readfirstlane_b32 s46, v3")
                a.e(f"s_add_u32 s{S_SPIN}, s{S_SPIN}, 1")
                a.e("s_cmp_eq_u32 s46, 1")
                a.e(f"s_cbranch_scc1 K2_GOT{kq}_{d}")
                a.e(f"s_cmp_lt_u32 s{S_SPIN}, 2000000")
                a.e(f"s_cbranch_scc1 K2_POLL{kq}_{d}")
                a.label(f"K2_GOT{kq}_{d}")
                tb = V_OF + (d - 1) * 20 if d < 3 else V_T + 100
                for k in range(5):
                    if k in (0, 4): a.e(f"s_add_u32 s{S_T0}, s{S_XW}, {(kq*4+src)*20480 + (4096 if k == 4 else 0)}")
                    a.e(f"buffer_load_dwordx4 {vr(tb+4*k,4)}, v{V_L16}, s[{S_WS}:{S_WS+3}], s{S_T0} offen offset:{(k&3)*1024} sc0 sc1")
            if kq < 3:
                a.e("s_branch K2_SUM")
                a.label(f"K2_X{kq+1}")
        a.label("K2_SUM")
        self.stamp(4)
        a.e("s_mov_b32 s46, 0xffff0000")
        for d in range(1, 4):
            if d == 3: a.e("s_waitcnt vmcnt(0)")
            tb = V_OF + (d - 1) * 20 if d < 3 else V_T + 100
            for r in range(20):
                a.e(f"v_lshlrev_b32 v4, 16, v{tb+r}")
                a.e(f"v_and_b32 v5, s46, v{tb+r}")
                a.e(f"v_add_f32 v{V_T+2*r}, v{V_T+2*r}, v4")
                a.e(f"v_add_f32 v{V_T+2*r+1}, v{V_T+2*r+1}, v5")
        for tl in range(10):
            t, n5 = divmod(tl, 5)
            a.e(f"v_cvt_pk_bf16_f32 v{V_T+tl*4}, v{V_T+tl*4}, v{V_T+tl*4+1}")
            a.e(f"v_cvt_pk_bf16_f32 v{V_T+tl*4+1}, v{V_T+tl*4+2}, v{V_T+tl*4+3}")
            if n5 == 0:
                a.e(f"s_add_u32 s{S_T0}, s{S_OUTOFF}, {t*32*2560}")
            a.e(f"buffer_store_dwordx2 {vr(V_T+tl*4,2)}, v{V_OUT}, s[{S_OUT}:{S_OUT+3}], s{S_T0} offen offset:{n5*16}")
        if self.opt.get("stamp2"):
            a.e("s_waitcnt vmcnt(0)")
        self.stamp(5)
        self.stamp_store()
        a.label("K2_END")
        a.e("s_endpgm")
        self.paths["k2"] = a.lines[i0:l1] + a.lines[l0:]
```

```python
import re

class Asm:
    def __init__(self):
        self.lines = []
        self.lg = []
        self.vm = []
    def raw(self, s):
        self.lines.append(s)
    def e(self, s):
        self.lines.append("  " + s)
    def label(self, l):
        self.lines.append(l + ":")
    def c(self, s):
        self.lines.append("  ; " + s)
    def ds(self, s, tag):
        self.e(s); self.lg.append(tag)
    def lg_need(self, tag):
        idx = [i for i, t in enumerate(self.lg) if t == tag]
        if not idx: return None
        return len(self.lg) - 1 - idx[-1]
    def wait_lg(self, tag):
        n = self.lg_need(tag)
        if n is None: return False
        assert n <= 15, n
        self.e(f"s_waitcnt lgkmcnt({n})")
        self.lg = self.lg[len(self.lg) - n:] if n else []
        return True
    def wait_lg_all(self):
        self.e("s_waitcnt lgkmcnt(0)"); self.lg = []
    def vmem(self, s, tag):
        self.e(s); self.vm.append(tag)
    def vm_need(self, tags):
        if not isinstance(tags, (list, tuple, set)): tags = [tags]
        idx = [i for i, t in enumerate(self.vm) if t in tags]
        if not idx: return None
        return len(self.vm) - 1 - idx[-1]
    def wait_vm(self, tags):
        n = self.vm_need(tags)
        if n is None: return False
        assert n <= 63, n
        self.e(f"s_waitcnt vmcnt({n})")
        self.vm = self.vm[len(self.vm) - n:] if n else []
        return True
    def wait_vm_all(self):
        self.e("s_waitcnt vmcnt(0)"); self.vm = []
    def text(self):
        return "\n".join(self.lines) + "\n"

def vr(b, n=1):
    return f"v{b}" if n == 1 else f"v[{b}:{b+n-1}]"
def ar(b, n=1):
    return f"a{b}" if n == 1 else f"a[{b}:{b+n-1}]"
def sr(b, n=1):
    return f"s{b}" if n == 1 else f"s[{b}:{b+n-1}]"

_REG = re.compile(r"\b([va])(?:(\d+)|\[(\d+):(\d+)\])")
TRANS = ("v_exp_f32", "v_log_f32", "v_rcp_f32", "v_rsq_f32", "v_sqrt_f32", "v_sin_f32", "v_cos_f32")

def _regs(tok):
    out = set()
    for m in _REG.finditer(tok):
        k = m.group(1)
        if m.group(2) is not None:
            out.add((k, int(m.group(2))))
        else:
            for i in range(int(m.group(3)), int(m.group(4)) + 1): out.add((k, i))
    return out

def _split(ins):
    ins = ins.split(";")[0].strip()
    if not ins: return None
    parts = ins.split(None, 1)
    mn = parts[0]
    ops = []
    if len(parts) > 1:
        depth = 0; cur = ""
        for ch in parts[1]:
            if ch == "[": depth += 1
            if ch == "]": depth -= 1
            if ch == "," and depth == 0:
                ops.append(cur.strip()); cur = ""
            else: cur += ch
        ops.append(cur.strip())
    return mn, ops

class I:
    pass

def decode(ins):
    sp = _split(ins)
    if sp is None: return None
    mn, ops = sp
    i = I(); i.text = ins.strip(); i.mn = mn
    i.wr = set(); i.rd = set(); i.kind = "other"; i.ws = 1
    i.srcC = set(); i.srcAB = set()
    if mn == "s_nop":
        i.ws = int(ops[0], 0) + 1
    elif mn.startswith("v_mfma"):
        i.kind = "mfma"; i.wr = _regs(ops[0]); i.srcAB = _regs(ops[1]) | _regs(ops[2]); i.srcC = _regs(ops[3])
        i.rd = i.srcAB | i.srcC
        i.passes = 8 if "32x32x16" in mn else 4
    elif mn.startswith("v_permlane"):
        i.kind = "perm"; i.wr = _regs(ops[0]) | _regs(ops[1]); i.rd = set(i.wr)
    elif mn.startswith("v_cmp"):
        i.kind = "valu"; i.rd = set().union(*[_regs(o) for o in ops[1:]])
    elif mn in ("v_readfirstlane_b32", "v_readlane_b32"):
        i.kind = "rdlane"; i.rd = _regs(ops[1])
    elif mn.startswith("v_"):
        i.kind = "trans" if mn.replace("_e32", "").replace("_e64", "") in TRANS else "valu"
        i.wr = _regs(ops[0]); i.rd = set().union(*[_regs(o) for o in ops[1:]]) if len(ops) > 1 else set()
        if mn.startswith("v_fmac") or mn.startswith("v_pk_fmac"): i.rd |= i.wr
    elif mn.startswith("ds_read") :
        i.kind = "mem"; i.wr = _regs(ops[0]); i.rd = _regs(ops[1].split()[0])
    elif mn.startswith("ds_write"):
        i.kind = "mem"; i.rd = set().union(*[_regs(o.split()[0]) for o in ops])
    elif mn.startswith("buffer_load") or mn.startswith("global_load"):
        i.kind = "mem"
        if " lds" in ins.split(";")[0] or "_lds_" in mn:
            i.rd = _regs(ops[0])
        else:
            i.wr = _regs(ops[0]); i.rd = _regs(ops[1])
    elif mn.startswith("buffer_store") or mn.startswith("global_store"):
        i.kind = "store"; i.rd = _regs(ops[0]) | _regs(ops[1])
        i.data = _regs(ops[0]) if mn.startswith("buffer") else _regs(ops[1])
        i.wide = ("x4" in mn or "x3" in mn)
    return i

def check_linear(instrs, what=""):
    dec = [d for d in (decode(x) for x in instrs if not x.rstrip().endswith(":") and not x.strip().startswith(".") and not x.strip().startswith(";")) if d]
    probs = []
    pos = []; p = 0
    for d in dec:
        pos.append(p); p += d.ws
    for k, d in enumerate(dec):
        j = k - 1
        while j >= 0:
            pr = dec[j]
            dist = pos[k] - pos[j] - pr.ws
            if dist >= 24: break
            def bad(need, why):
                if dist < need:
                    probs.append(f"{what}: {why}: need {need} have {dist}: [{pr.text}] -> [{d.text}]")
            if pr.kind == "mfma":
                n = 12 if pr.passes == 8 else 8
                if d.kind == "mfma":
                    if pr.wr & d.srcAB: bad(n, "mfma D->A/B")
                    if pr.wr & d.srcC and pr.wr != d.srcC: bad(n - 2, "mfma D->C overlap")
                    if pr.wr & d.wr and not (pr.wr == d.srcC == d.wr) and not (pr.wr & d.srcC): bad(n, "mfma D->D WAW (conservative)")
                elif d.kind in ("valu", "trans", "perm", "rdlane", "mem", "store"):
                    if pr.wr & (d.rd | d.wr): bad(n, "mfma D->use")
                    if d.kind in ("valu", "trans", "perm") and (pr.srcC & d.wr): bad(7 if pr.passes == 8 else 3, "mfma C WAR")
            if pr.kind in ("valu", "trans", "perm"):
                if d.kind == "mfma" and (pr.wr & d.rd): bad(2, "valu->mfma")
                if d.kind == "perm" and (pr.wr & d.rd): bad(2, "valu->permlane")
                if d.kind == "rdlane" and (pr.wr & d.rd): bad(1, "valu->readlane")
                if pr.kind == "trans" and d.kind in ("valu", "perm") and (pr.wr & d.rd): bad(1, "trans->valu")
            if pr.kind == "store" and pr.wide and d.kind in ("valu", "trans", "perm") and (pr.data & d.wr): bad(2, "store data WAR")
            j -= 1
    return probs


def claim_issue(a, s_dbg_lo, s_wave, srd, tmp0, tmp1, vz, vr_):
    a.e(f"s_mov_b32 s{srd}, s{s_dbg_lo}")
    a.e(f"s_mov_b32 s{srd+1}, s{s_dbg_lo+1}")
    a.e(f"s_mov_b32 s{srd+2}, 256")
    a.e(f"s_mov_b32 s{srd+3}, 0x00020000")
    a.e(f"s_getreg_b32 s{tmp0}, hwreg(HW_REG_XCC_ID)")
    a.e(f"s_and_b32 s{tmp0}, s{tmp0}, 7")
    a.e(f"s_lshl_b32 s{tmp1}, s{tmp0}, 5")
    a.e(f"v_mov_b32 v{vz}, 0")
    a.e(f"v_mov_b32 v{vr_}, 1")
    a.e(f"s_cmp_eq_u32 s{s_wave}, 0")
    a.e(f"s_cbranch_scc0 CLI_{srd}_{vz}")
    a.e("s_mov_b64 exec, 1")
    a.e(f"buffer_atomic_add v{vr_}, v{vz}, s[{srd}:{srd+3}], s{tmp1} offen sc0 sc1")
    a.e("s_mov_b64 exec, -1")
    a.label(f"CLI_{srd}_{vz}")

def claim_finish(a, pfx, s_wave, s_out, srd, tmp0, tmp1, vz, vr_, va, lds_off=0):
    a.e(f"v_mov_b32 v{va}, {lds_off}")
    a.e(f"s_cmp_lg_u32 s{s_wave}, 0")
    a.e(f"s_cbranch_scc1 {pfx}_CLAIMED")
    a.e("s_mov_b64 exec, 1")
    a.e(f"s_mov_b32 s{s_out}, 0")
    a.e(f"s_branch {pfx}_CHK")
    a.label(f"{pfx}_TRY")
    a.e(f"v_mov_b32 v{vr_}, 1")
    a.e(f"s_lshl_b32 s{tmp1}, s{tmp0}, 5")
    a.e(f"buffer_atomic_add v{vr_}, v{vz}, s[{srd}:{srd+3}], s{tmp1} offen sc0 sc1")
    a.label(f"{pfx}_CHK")
    a.e("s_waitcnt vmcnt(0)")
    a.e(f"v_readfirstlane_b32 s{tmp1}, v{vr_}")
    a.e("s_nop 3")
    a.e(f"s_cmp_lt_u32 s{tmp1}, 32")
    a.e(f"s_cbranch_scc1 {pfx}_GOT")
    a.e(f"s_add_u32 s{tmp0}, s{tmp0}, 1")
    a.e(f"s_and_b32 s{tmp0}, s{tmp0}, 7")
    a.e(f"s_add_u32 s{s_out}, s{s_out}, 1")
    a.e(f"s_cmp_lt_u32 s{s_out}, 8")
    a.e(f"s_cbranch_scc1 {pfx}_TRY")
    a.label(f"{pfx}_GOT")
    a.e(f"s_and_b32 s{tmp1}, s{tmp1}, 31")
    a.e(f"s_lshl_b32 s{tmp1}, s{tmp1}, 3")
    a.e(f"s_or_b32 s{tmp1}, s{tmp1}, s{tmp0}")
    a.e(f"v_mov_b32 v{vr_}, s{tmp1}")
    a.e(f"ds_write_b32 v{va}, v{vr_}")
    a.e("s_waitcnt lgkmcnt(0)")
    a.e("s_mov_b64 exec, -1")
    a.label(f"{pfx}_CLAIMED")
    a.e("s_barrier")
    a.e(f"ds_read_b32 v{vr_}, v{va}")
    a.e("s_waitcnt lgkmcnt(0)")
    a.e(f"v_readfirstlane_b32 s{s_out}, v{vr_}")
    a.e("s_nop 3")
    a.e(f"s_and_b32 s{s_out}, s{s_out}, 255")
```

```python
from asmlib import *
import math, struct

def f32bits(x):
    return struct.unpack("<I", struct.pack("<f", x))[0]

S_X, S_WQ, S_K, S_V, S_WS, S_NUL = 8, 12, 16, 20, 24, 4
S_WAVE, S_W3072, S_ROUND, S_B, S_H, S_C = 54, 55, 56, 57, 58, 59
S_KOFF, S_VOFF, S_PA, S_PB, S_PC, S_CNT, S_FLAG, S_SITE = 60, 61, 62, 63, 64, 65, 66, 67
S_T0, S_T1, S_XOFF, S_WQOFF, S_WSOFF, S_T2, S_T3 = 68, 69, 70, 71, 72, 73, 74
S_XM0, S_ITOFF, S_DK, S_DV = 75, 78, 79, 3
S_TW, S_TO1, S_TO2 = 48, 52, 53
V_TMP = 1
V_XD = 9
V_KA, V_VA = 17, 21
V_KD = 25
V_L16 = 28
V_AL, V_THR = 29, 33
V_L, V_M, V_NEGM, V_MX = 80, 84, 88, 92
V_WD = 41
V_FL = 44
V_TO1, V_TO2 = 45, 46
V_P = 48
V_CI = 64
V_XA = 64
V_WA = 68
V_S = 96
V_Q = 160
A_O = 0
A_F = 192
A_ST = 240
RING = 12
PAGE = 12288
WPAGE = [4, 6, 5, 7, 3]
CSC = (192 ** -0.5) * math.log2(math.e)
THR_T = 8.0
LMAX = 65536.0

class K1:
    def __init__(self, a, opt):
        self.a = a
        self.opt = opt
        self.fc = 0
        self.rare = []
        self.paths = {}

    def setup(self):
        a = self.a
        T = 100
        a.e("s_cmp_ge_u32 s2, 256")
        a.e("s_cbranch_scc1 K1_END")
        a.e(f"s_load_dwordx16 s[28:43], s[0:1], 0")
        a.e(f"s_load_dwordx8 s[44:51], s[0:1], 64")
        a.e(f"s_load_dwordx2 s[52:53], s[0:1], 96")
        a.e("v_and_b32 v101, 63, v0")
        a.e("v_lshrrev_b32 v102, 6, v0")
        a.e("s_nop 1")
        a.e(f"v_readfirstlane_b32 s{S_WAVE}, v102")
        if self.opt.get("xcc", 1):
            a.e("s_waitcnt lgkmcnt(0)")
            claim_issue(a, 50, S_WAVE, S_X, S_KOFF, S_VOFF, 1, 2)
        a.e("v_lshrrev_b32 v104, 4, v101")
        a.e("v_and_b32 v103, 15, v101")
        a.e("v_and_b32 v105, 6, v101")
        a.e(f"s_mul_i32 s{S_W3072}, s{S_WAVE}, 3072")
        a.e(f"s_mov_b32 s{S_C}, 0x{f32bits(CSC):08x}")
        a.e(f"v_lshlrev_b32 v{V_L16}, 4, v101")
        a.e(f"v_lshlrev_b32 v{V_TO1}, 7, v101")
        a.e("v_min_u32 v107, 47, v101")
        a.e("v_mul_u32_u24 v108, 2731, v107"); a.e("v_lshrrev_b32 v108, 16, v108"); a.e("v_mul_u32_u24 v108, 9216, v108")
        a.e(f"v_lshl_add_u32 v{V_TO2}, v107, 7, v108")
        a.e(f"v_lshlrev_b32 v{V_FL}, 2, v102")
        a.e(f"v_add_u32 v{V_FL}, {PAGE}, v{V_FL}")
        a.e(f"s_lshl_b32 s{S_T0}, s{S_WAVE}, 13")
        a.e(f"s_add_u32 s{S_XM0}, s{S_T0}, 98304")
        a.e("v_mul_u32_u24 v107, 384, v103")
        a.e("v_lshlrev_b32 v109, 7, v103")
        a.e(f"v_add_u32 v109, s{S_XM0}, v109")
        for b in range(2):
            a.e(f"v_add_u32 v108, {4*b}, v104")
            a.e("v_xor_b32 v108, v108, v105")
            a.e(f"v_lshl_add_u32 v{V_KA+b}, v108, 4, v107")
            a.e(f"v_lshl_add_u32 v{V_XA+b}, v108, 4, v109")
        a.e("v_bfe_u32 v109, v101, 2, 2")
        a.e("v_bfe_u32 v110, v101, 1, 1")
        a.e("v_and_b32 v111, 1, v101")
        a.e("v_lshlrev_b32 v111, 3, v111")
        a.e("v_and_b32 v112, 1, v104")
        a.e("v_lshlrev_b32 v112, 2, v112")
        a.e("v_and_b32 v113, 2, v109")
        a.e("v_or_b32 v112, v112, v113")
        a.e("v_lshl_add_u32 v113, v104, 2, v109")
        a.e("v_mul_u32_u24 v113, 384, v113")
        a.e("v_add_u32 v113, v113, v111")
        a.e("v_lshl_add_u32 v114, v104, 3, v109")
        a.e("v_mul_u32_u24 v114, 384, v114")
        a.e("v_add_u32 v114, v114, v111")
        a.e(f"v_add_u32 v114, {3*PAGE}, v114")
        for b in range(4):
            a.e(f"v_add_u32 v115, {2*b}, v110")
            a.e("v_xor_b32 v115, v115, v112")
            a.e(f"v_lshl_add_u32 v{V_VA+b}, v115, 4, v113")
            a.e(f"v_lshl_add_u32 v{V_WA+b}, v115, 4, v114")
        a.e(f"s_mul_i32 s{S_T0}, s{S_WAVE}, 192")
        for i in range(3):
            a.e(f"v_add_u32 v107, s{S_T0}, v101")
            if i: a.e(f"v_add_u32 v107, {64*i}, v107")
            a.e("v_mul_u32_u24 v108, 2731, v107")
            a.e("v_lshrrev_b32 v108, 16, v108")
            a.e("v_and_b32 v113, 6, v108")
            a.e("v_lshlrev_b32 v113, 4, v113")
            a.e("v_lshlrev_b32 v114, 4, v107")
            a.e("v_xor_b32 v113, v114, v113")
            a.e(f"v_subrev_u32 v{V_KD+i}, {1024*i}, v113")
            a.e("v_bfe_u32 v113, v108, 3, 1")
            a.e("v_lshlrev_b32 v113, 2, v113")
            a.e("v_and_b32 v115, 2, v108")
            a.e("v_or_b32 v113, v113, v115")
            a.e("v_lshlrev_b32 v113, 4, v113")
            a.e("v_xor_b32 v113, v114, v113")
            a.e("v_mul_u32_u24 v115, 11904, v108")
            a.e("v_add_u32 v113, v115, v113")
            a.e(f"v_subrev_u32 v{V_WD+i}, {1024*i}, v113")
        a.e(f"s_mul_i32 s{S_T0}, s{S_WAVE}, {64*1280}")
        for i in range(8):
            a.e("v_lshrrev_b32 v107, 3, v101")
            a.e("v_and_b32 v113, 6, v107")
            a.e(f"v_add_u32 v107, {8*i}, v107")
            a.e("v_and_b32 v114, 7, v101")
            a.e("v_xor_b32 v113, v113, v114")
            a.e("v_mul_u32_u24 v107, 1280, v107")
            a.e("v_lshl_add_u32 v107, v113, 4, v107")
            a.e(f"v_add_u32 v107, s{S_T0}, v107")
            a.e(f"v_subrev_u32 v{V_XD+i}, {1024*(i&3)}, v107")
        for i in range(8):
            a.e(f"v_accvgpr_write_b32 a{A_ST+i}, v{V_XA+i}")
        a.e("s_waitcnt lgkmcnt(0)")
        if self.opt.get("xcc", 1):
            claim_finish(a, "K1", S_WAVE, 2, S_X, S_KOFF, S_VOFF, 1, 2, 3, lds_off=PAGE)
        a.e(f"s_mov_b32 s{S_WS}, s52")
        a.e(f"s_mov_b32 s{S_WS+1}, s53")
        a.e(f"s_mov_b32 s{S_WS+2}, {439353344}")
        a.e(f"s_mov_b32 s{S_WS+3}, 0x00020000")
        a.e(f"s_mov_b32 s{S_NUL}, s52")
        a.e(f"s_mov_b32 s{S_NUL+1}, s53")
        a.e(f"s_mov_b32 s{S_NUL+2}, 0")
        a.e(f"s_mov_b32 s{S_NUL+3}, 0x00020000")
        a.e("v_min_u32 v107, 15, v101")
        a.e("v_lshlrev_b32 v107, 2, v107")
        a.e("v_mov_b32 v108, 0")
        a.e(f"s_lshl_b32 s{S_T0}, s2, 6")
        a.e(f"s_add_u32 s{S_T0}, s{S_T0}, {52<<20}")
        a.e(f"buffer_store_dword v108, v107, s[{S_WS}:{S_WS+3}], s{S_T0} offen")
        a.e(f"s_and_b32 s{S_T0}, s2, 1")
        a.e(f"s_lshl_b32 s{S_T0}, s{S_T0}, 2")
        a.e(f"s_bfe_u32 s{S_T1}, s2, 0x20003")
        a.e(f"s_or_b32 s{S_B}, s{S_T0}, s{S_T1}")
        a.e(f"s_bfe_u32 s{S_T0}, s2, 0x20001")
        a.e(f"s_lshl_b32 s{S_T0}, s{S_T0}, 3")
        a.e(f"s_lshr_b32 s{S_T1}, s2, 5")
        a.e(f"s_or_b32 s{S_H}, s{S_T0}, s{S_T1}")
        a.e(f"s_mov_b32 s{S_ROUND}, 0")
        a.e(f"s_lshl_b32 s{S_T0}, s{S_B}, 5")
        a.e(f"s_add_u32 s{S_T0}, s{S_T0}, s{S_H}")
        a.e(f"s_mul_i32 s{S_ITOFF}, s{S_T0}, 393216")
        a.e(f"s_mul_i32 s{S_XOFF}, s{S_B}, 327680")
        a.e(f"s_mul_i32 s{S_WQOFF}, s{S_H}, 384")
        for s in (S_X, S_WQ, S_K, S_V):
            a.e(f"s_mov_b32 s{s+3}, 0x00020000")

    def srd_xw(self, mode):
        o = [f"s_cmp_eq_u32 s{S_ROUND}, 0"]
        if mode == "cur":
            o += [f"s_cselect_b32 s{S_X}, s28, s38", f"s_cselect_b32 s{S_X+1}, s29, s39", f"s_mov_b32 s{S_X+2}, {8*256*640*2}",
                  f"s_cselect_b32 s{S_WQ}, s34, s44", f"s_cselect_b32 s{S_WQ+1}, s35, s45", f"s_mov_b32 s{S_WQ+2}, {640*6144*2}"]
        else:
            o += [f"s_mov_b32 s{S_X}, s38", f"s_mov_b32 s{S_X+1}, s39", f"s_cselect_b32 s{S_X+2}, {8*256*640*2}, 0",
                  f"s_mov_b32 s{S_WQ}, s44", f"s_mov_b32 s{S_WQ+1}, s45", f"s_cselect_b32 s{S_WQ+2}, {640*6144*2}, 0"]
        return o
    def srd_kv(self, which, mode):
        s, pa, pb = (S_K, 30, 40) if which == "K" else (S_V, 32, 42)
        o = [f"s_cmp_eq_u32 s{S_ROUND}, 0"]
        if mode == "cur":
            o += [f"s_cselect_b32 s{s}, s{pa}, s{pb}", f"s_cselect_b32 s{s+1}, s{pa+1}, s{pb+1}", f"s_mov_b32 s{s+2}, 393216"]
            o += [f"s_add_u32 s{s}, s{s}, s{S_ITOFF}", f"s_addc_u32 s{s+1}, s{s+1}, 0"]
        else:
            o += [f"s_cselect_b32 s{s+2}, 393216, 0", f"s_add_u32 s{s}, s{pb}, s{S_ITOFF}", f"s_addc_u32 s{s+1}, s{pb+1}, 0"]
        return o

    def item_setup(self):
        a = self.a
        for l in self.srd_kv("V", "cur"): a.e(l)
        a.e(f"s_mul_i32 s{S_WSOFF}, s{S_ROUND}, 25165824")
        a.e(f"s_lshl_b32 s{S_T0}, s{S_B}, 4")
        a.e(f"s_lshl_b32 s{S_T1}, s{S_WAVE}, 2")
        a.e(f"s_add_u32 s{S_T0}, s{S_T0}, s{S_T1}")
        a.e(f"s_mul_i32 s{S_T0}, s{S_T0}, 196608")
        a.e(f"s_add_u32 s{S_WSOFF}, s{S_WSOFF}, s{S_T0}")
        a.e(f"s_mul_i32 s{S_T0}, s{S_H}, 6144")
        a.e(f"s_add_u32 s{S_WSOFF}, s{S_WSOFF}, s{S_T0}")
        self.ring_init()
        for i in range(8):
            a.e(f"v_accvgpr_read_b32 v{V_XA+i}, a{A_ST+i}")

    def ring_init(self):
        a = self.a
        a.e(f"s_add_u32 s{S_PA}, s{S_W3072}, 98304")
        a.e(f"s_mov_b32 s{S_PB}, s{S_W3072}")
        a.e(f"s_add_u32 s{S_PC}, s{S_W3072}, 49152")
        a.e(f"s_mov_b32 s{S_FLAG}, 0")
        a.e(f"s_mov_b32 s{S_KOFF}, {5*PAGE}")
        a.e(f"s_mov_b32 s{S_VOFF}, {3*PAGE}")

    def addr_reset(self):
        a = self.a
        for i in range(2):
            a.e(f"v_subrev_u32 v{V_KA+i}, 49152, v{V_KA+i}")

    def nt(self):
        return " nt" if self.opt.get("nt", 1) else ""
    def VM(self, s, tag):
        return (self.opt.get("DMAC", 8), ("VM", s, tag))

    def g_kv_static(self, which, tile, tag=None):
        srd = S_K if which == "K" else S_V
        page = 2 * (tile % 6) + (0 if which == "K" else 1)
        o = [(4, f"s_add_u32 m0, s{S_W3072}, {page*PAGE}"), (4, f"s_mov_b32 s{S_T2}, {tile*PAGE}")]
        for i in range(3):
            o.append(self.VM(f"buffer_load_dwordx4 v{V_KD+i}, s[{srd}:{srd+3}], s{S_T2} offen offset:{1024*i}{self.nt()} lds", tag or (which, tile)))
        return o
    def g_wq(self, u):
        o = [(4, f"s_add_u32 m0, s{S_W3072}, {WPAGE[u % 5]*PAGE}"), (4, f"s_add_u32 s{S_T2}, s{S_WQOFF}, {u*32*12288}")]
        for i in range(3):
            o.append(self.VM(f"buffer_load_dwordx4 v{V_WD+i}, s[{S_WQ}:{S_WQ+3}], s{S_T2} offen offset:{1024*i} lds", ("W", u)))
        return o
    def g_x(self, c, hlf):
        o = [(4, f"s_add_u32 m0, s{S_XM0}, {(c&1)*32768 + hlf*4096}"), (4, f"s_add_u32 s{S_T3}, s{S_XOFF}, {c*128}")]
        for i in range(4):
            o.append(self.VM(f"buffer_load_dwordx4 v{V_XD+4*hlf+i}, s[{S_X}:{S_X+3}], s{S_T3} offen offset:{1024*i} lds", ("X", c)))
        return o
    def emit(self, it):
        a = self.a
        if isinstance(it, tuple):
            if it[0] == "VM": a.vmem(it[1], it[2])
            elif it[0] == "DS": a.ds(it[1], it[2])
            elif it[0] == "WVM": a.wait_vm(it[1])
            elif it[0] == "WLG": a.wait_lg(it[1])
            elif it[0] == "FN": it[1]()
        else:
            a.e(it)
    def emit_all(self, items):
        for c, it in items: self.emit(it)

    def xreg(self, c, qt, s):
        return V_S + (c & 1) * 32 + s * 16 + qt * 4
    def x_read(self, c, n):
        s, qt = n >> 2, n & 3
        self.a.ds(f"ds_read_b128 {vr(self.xreg(c,qt,s),4)}, v{V_XA+s} offset:{(c&1)*32768 + qt*2048}", ("xr", c))
    def oacc(self, dt, qt):
        return A_O + (dt * 4 + qt) * 4
    def slot(self, n):
        return A_F + 4 * (n % RING)

    def g_touch_x(self):
        T = V_TMP
        S4 = lambda ls: [(4, l) for l in ls]
        o = S4([f"s_lshr_b32 s{S_T0}, s2, 3", f"s_lshl_b32 s{S_T0}, s{S_T0}, 2", f"s_add_u32 s{S_T0}, s{S_T0}, s{S_WAVE}",
                f"s_and_b32 s{S_T1}, s2, 1", f"s_mul_i32 s{S_T1}, s{S_T1}, 1310720",
                f"s_mul_i32 s{S_T0}, s{S_T0}, 10240", f"s_add_u32 s{S_T1}, s{S_T1}, s{S_T0}"])
        o.append(self.VM(f"buffer_load_dword v47, v{V_TO1}, s[{S_X}:{S_X+3}], s{S_T1} offen", "T"))
        o += S4([f"v_min_u32 v{T+3}, {15*128}, v{V_TO1}", f"s_add_u32 s{S_T1}, s{S_T1}, 8192"])
        o.append(self.VM(f"buffer_load_dword v47, v{T+3}, s[{S_X}:{S_X+3}], s{S_T1} offen", "T"))
        return o

    def g_touch_w(self):
        T = V_TMP
        S4 = lambda ls: [(4, l) for l in ls]
        o = S4([f"s_lshr_b32 s{S_T0}, s2, 3", f"s_lshl_b32 s{S_T0}, s{S_T0}, 2", f"s_add_u32 s{S_T0}, s{S_T0}, s{S_WAVE}",
                f"s_bfe_u32 s{S_T1}, s2, 0x20001", f"s_mul_i32 s{S_T1}, s{S_T1}, 3072",
                f"s_mul_i32 s{S_T0}, s{S_T0}, {5*12288}", f"s_add_u32 s{S_T1}, s{S_T1}, s{S_T0}"])
        o.append(self.VM(f"buffer_load_dword v47, v{V_TO2}, s[{S_WQ}:{S_WQ+3}], s{S_T1} offen", "T"))
        o += S4([f"s_add_u32 s{S_T1}, s{S_T1}, 24576"])
        o.append(self.VM(f"buffer_load_dword v47, v{V_TO2}, s[{S_WQ}:{S_WQ+3}], s{S_T1} offen", "T"))
        o += S4([f"v_min_u32 v{T+3}, {23*128}, v{V_TO1}", f"s_add_u32 s{S_T1}, s{S_T1}, 24576"])
        o.append(self.VM(f"buffer_load_dword v47, v{T+3}, s[{S_WQ}:{S_WQ+3}], s{S_T1} offen", "T"))
        return o

    def g_touch_o(self, cold=False):
        T = V_TMP
        S4 = lambda ls: [(4, l) for l in ls]
        if cold:
            o = S4([f"s_mov_b32 s{S_NUL+2}, 0", f"s_mov_b32 s{S_T1}, 0"])
        else:
            o = S4([f"s_cmp_lt_u32 s2, 128", f"s_cselect_b32 s{S_NUL}, s36, s46", f"s_cselect_b32 s{S_NUL+1}, s37, s47",
                    f"s_cmp_eq_u32 s{S_ROUND}, 0", f"s_cselect_b32 s{S_NUL+2}, 0, {6144*640*2}",
                    f"s_and_b32 s{S_T0}, s2, 127", f"s_lshl_b32 s{S_T0}, s{S_T0}, 2", f"s_add_u32 s{S_T0}, s{S_T0}, s{S_WAVE}", f"s_mul_i32 s{S_T1}, s{S_T0}, 15360"])
        o.append(self.VM(f"buffer_load_dword v47, v{V_TO1}, s[{S_NUL}:{S_NUL+3}], s{S_T1} offen", "T"))
        o += S4([f"v_min_u32 v{T+3}, {55*128}, v{V_TO1}", f"s_add_u32 s{S_T1}, s{S_T1}, 8192"])
        o.append(self.VM(f"buffer_load_dword v47, v{T+3}, s[{S_NUL}:{S_NUL+3}], s{S_T1} offen", "T"))
        return o

    def cold_loads(self):
        a = self.a
        for l in self.srd_xw("cur") + self.srd_kv("K", "cur"): a.e(l)
        for u in range(3): self.emit_all(self.g_wq(u))
        self.emit_all(self.g_touch_x())
        self.emit_all(self.g_wq(3))
        self.emit_all(self.g_touch_w())
        self.emit_all(self.g_touch_o(cold=True))
        for c in range(2):
            for h in range(2): self.emit_all(self.g_x(c, h))
        self.emit_all(self.g_kv_static("K", 0))
        for i in range(24):
            a.vmem(f"buffer_load_dword v47, v{V_L16}, s[{S_NUL}:{S_NUL+3}], 0 offen", "ST")

    def phase_q(self):
        a = self.a
        D = self.opt.get("DQ", 5)
        a.c("---- phase Q")
        q0 = len(a.lines)
        a.wait_vm([("X", 0), ("W", 0)])
        a.e("s_barrier")
        for n in range(8): self.x_read(0, n)
        base = self.fc
        def wread(g, i):
            u, dt = divmod(g, 12)
            off = (WPAGE[u % 5] - 3) * PAGE + i * 1536 + (dt >> 2) * 128
            a.ds(f"ds_read_b64_tr_b16 {ar(self.slot(base+g)+2*i,2)}, v{V_WA+(dt&3)} offset:{off}", ("wf", g))
        for g in range(D):
            wread(g, 0); wread(g, 1)
        queue = self.g_kv_static("K", 1) + self.g_kv_static("V", 0)
        NG = 240
        last_vm = -9
        for g in range(NG):
            u, r = divmod(g, 12); dt = r
            c = u >> 1
            if r == 0 and (u & 1) == 0:
                a.wait_lg(("xr", c))
                if c + 2 < 10: queue += self.g_x(c + 2, 0) + self.g_x(c + 2, 1)
            GQ = self.opt.get("GQ", 2)
            a.wait_lg(("wf", min(g + (GQ - 1 - g % GQ), NG - 1)))
            for t in range(4):
                acc = ar(self.oacc(dt, t), 4)
                cin = "0" if u == 0 else acc
                a.e(f"v_mfma_f32_16x16x32_bf16 {acc}, {ar(self.slot(base+g),4)}, {vr(self.xreg(c,t,u&1),4)}, {cin}")
                if g + D < NG and t < 2: wread(g + D, t)
                if t < 2: continue
                m = 2 * g + (t - 2)
                while queue:
                    cst, it = queue[0]
                    if isinstance(it, tuple) and it[0] == "VM":
                        if m - last_vm < self.opt.get("QSP", 2): break
                        last_vm = m
                        self.emit(it); queue.pop(0)
                        break
                    self.emit(it); queue.pop(0)
            if r == 12 - D - 1 and u + 1 < 20:
                a.wait_vm([("W", u + 1)])
                a.e("s_barrier")
                if u + 4 < 20: queue += self.g_wq(u + 4)
                elif self.opt.get("early", 1):
                    if u == 16: queue += self.g_kv_static("K", 2)
                    if u == 17: queue += self.g_kv_static("K", 3)
                    if u == 18: queue += self.g_kv_static("V", 2) + self.g_kv_static("K", 4)
            if (u & 1) == 1 and c + 1 < 10:
                if r == 1: a.wait_vm([("X", c + 1)])
                if 1 <= r <= 8: self.x_read(c + 1, r - 1)
        self.emit_all(queue)
        self.fc = base + NG
        a.e("s_barrier")
        if self.opt.get("qnodma"):
            a.lines[q0:] = [l for l in a.lines[q0:] if not l.strip().startswith("buffer_load")]

    def q_convert(self):
        a = self.a
        a.e("s_nop 7")
        pend = None
        for qt in range(4):
            for ds in range(6):
                for e in range(2):
                    for m in range(4):
                        a.e(f"v_accvgpr_read_b32 v{V_TMP+4*e+m}, a{self.oacc(2*ds+e, qt)+m}")
                if pend is not None:
                    a.e(f"v_permlane16_swap_b32 v{pend}, v{pend+2}")
                    a.e(f"v_permlane16_swap_b32 v{pend+1}, v{pend+3}")
                if not self.opt.get("dump_q"):
                    for m in range(8):
                        a.e(f"v_mul_f32 v{V_TMP+m}, s{S_C}, v{V_TMP+m}")
                q = V_Q + qt * 24 + ds * 4
                for m in range(4):
                    a.e(f"v_cvt_pk_bf16_f32 v{q+m}, v{V_TMP+2*m}, v{V_TMP+2*m+1}")
                a.e("s_nop 0")
                a.e(f"v_permlane32_swap_b32 v{q}, v{q+2}")
                a.e(f"v_permlane32_swap_b32 v{q+1}, v{q+3}")
                pend = q
        a.e("s_nop 1")
        a.e(f"v_permlane16_swap_b32 v{pend}, v{pend+2}")
        a.e(f"v_permlane16_swap_b32 v{pend+1}, v{pend+3}")

    def S(self, p, qt, e):
        return V_S + p * 32 + (e >> 2) * 16 + qt * 4 + (e & 3)

    def maxchain(self, p, t):
        mx = f"v{V_MX+t}"
        s = lambda e: f"v{self.S(p,t,e)}"
        return [(4, f"v_max3_f32 {mx}, {s(0)}, {s(1)}, {s(2)}"), (4, f"v_max3_f32 {mx}, {mx}, {s(3)}, {s(4)}"),
                (4, f"v_max3_f32 {mx}, {mx}, {s(5)}, {s(6)}"), (4, f"v_max_f32 {mx}, {mx}, {s(7)}")]

    def xreduce(self, reg, tmp, op):
        o = []
        for sw in ("v_permlane32_swap_b32", "v_permlane16_swap_b32"):
            o += [(4, f"v_mov_b32 v{tmp}, v{reg}"), (8, "s_nop 1"), (4, f"{sw} v{reg}, v{tmp}"), (4, f"{op} v{reg}, v{reg}, v{tmp}")]
        return o

    def q_max(self, p, t, site, first, safe):
        o = self.maxchain(p, t)
        mx = f"v{V_MX+t}"
        if first:
            o += self.xreduce(V_MX + t, V_TMP + t, "v_max_f32")
            o.append((4, f"v_mov_b32 v{V_M+t}, {mx}"))
            o.append((4, f"v_sub_f32 v{V_NEGM+t}, 0, {mx}"))
            o.append((4, f"v_mov_b32 v{V_L+t}, 0"))
            if safe:
                o.append((4, f"v_add_f32 v{V_THR+t}, 0x{f32bits(THR_T):08x}, {mx}"))
                o.append((4, f"v_mov_b32 v{V_AL+t}, 1.0"))
            else:
                for e in range(4):
                    o.append((4, f"v_mov_b32 v{V_CI+t*4+e}, v{V_NEGM+t}"))
        else:
            lab = f"RARE_{site}_{t}"; ret = f"RET_{site}_{t}"
            o.append((4, f"v_cmp_gt_f32 vcc, {mx}, v{V_THR+t}"))
            o.append((4, f"s_cbranch_vccnz {lab}\n{ret}:"))
            self.rare.append((lab, t, ret))
        return o

    def sub(self, p, t, e):
        return (4, f"v_add_f32 v{self.S(p,t,e)}, v{self.S(p,t,e)}, v{V_NEGM+t}")
    def exp(self, p, t, e):
        return (8, f"v_exp_f32 v{self.S(p,t,e)}, v{self.S(p,t,e)}")
    def add(self, p, t, e):
        return (4, f"v_add_f32 v{V_L+t}, v{V_L+t}, v{self.S(p,t,e)}")
    def cvt(self, p, t, m):
        return (4, f"v_cvt_pk_bf16_f32 v{V_P+t*4+m}, v{self.S(p,t,2*m)}, v{self.S(p,t,2*m+1)}")

    @staticmethod
    def inter(x, y, ny=1, lag=0):
        o = []; y = list(y)
        for k, it in enumerate(x):
            o.append(it)
            if k >= lag:
                for _ in range(ny):
                    if y: o.append(y.pop(0))
        return o + y

    def order(self):
        return [(t, e) for t in range(4) for e in range(4)] + [(t, e) for t in range(4) for e in range(4, 8)]

    def QB(self, p, site, first, safe):
        NB = self.opt.get("NB", 19)
        od = self.order()
        if safe:
            o = []
            for t in range(4): o += self.q_max(p, t, site, first, safe)
            o += [self.sub(p, t, e) for t, e in od]
            o += [self.exp(p, t, e) for t, e in od[:8]]
            return o
        if first:
            o = []
            for t in range(4): o += self.q_max(p, t, site, first, safe)
            o += [self.sub(p, t, e) for t, e in od]
            o += self.inter([self.exp(p, t, e) for t, e in od[:NB]], [self.add(p, t, e) for t, e in od[:NB]], 1, 1)
            return o
        return self.inter([self.exp(p, t, e) for t, e in od[:NB]], [self.add(p, t, e) for t, e in od[:NB]], 1, 1)

    def QA(self, p, safe):
        NB = 8 if safe else self.opt.get("NB", 19)
        od = self.order()
        c0 = [self.cvt(p, t, m) for t in range(4) for m in range(2)]
        c1 = [self.cvt(p, t, m) for t in range(4) for m in range(2, 4)]
        if safe:
            return self.inter([self.exp(p, t, e) for t, e in od[8:]], [self.add(p, t, e) for t, e in od[:23]], 1, 1) + [self.add(p, t, e) for t, e in od[23:]] + c0 + c1
        ex = self.inter([self.exp(p, t, e) for t, e in od[NB:]], [self.add(p, t, e) for t, e in od[NB:]], 1, 1)
        return self.inter(ex, c0, 1, 0) + c1

    def k_read(self, n, ks, kc):
        kh, ds = divmod(ks, 6)
        self.a.ds(f"ds_read_b128 {ar(self.slot(n),4)}, v{V_KA+(ds&1)} offset:{kc + kh*6144 + (ds>>1)*128}", ("f", n))
    def v_read(self, n, dt, vc, i):
        self.a.ds(f"ds_read_b64_tr_b16 {ar(self.slot(n)+2*i,2)}, v{V_VA+(dt&3)} offset:{vc + PAGE + i*6144 + (dt>>2)*128}", ("f", n))

    def iteration(self, odd, site, safe=False, first=False, czero=False, last=False, j=None, vq=None):
        a = self.a
        self._it0 = len(a.lines)
        D = self.opt.get("D", 5)
        G = self.opt.get("G", 2)
        BUD = self.opt.get("BUD", 8)
        do_qk = not last; do_pv = not first
        cur = 1 if odd else 0; nxt = 1 - cur
        kc = 0 if odd else 24576
        kc_next = 24576 if odd else 0
        vc = 24576 if odd else 0
        base = self.fc
        nk = 12 if do_qk else 0
        nv = 12 if do_pv else 0
        nolook = last or (j == 30)
        def reads_for(step):
            n = base + step
            if step < nk: return [lambda: self.k_read(n, step, kc)]
            if step < nk + nv:
                return [lambda: self.v_read(n, step - nk, vc, 0), lambda: self.v_read(n, step - nk, vc, 1)]
            if nolook: return []
            return [lambda: self.k_read(n, step - nk - nv, kc_next)]
        qa = [] if first else self.QA(cur, safe)
        qb = [] if last else self.QB(nxt, site, first, safe)
        def dma_group(which):
            if which == "K":
                m0 = f"s_add_u32 m0, s{S_PA}, 24576" if odd else f"s_mov_b32 m0, s{S_PB}"
                srd, so = S_K, S_KOFF
            else:
                m0 = f"s_add_u32 m0, s{S_PC}, 36864" if odd else f"s_add_u32 m0, s{S_PA}, 12288"
                srd, so = S_V, S_VOFF
            tag = which if j is None else (which, j + (6 if which == "K" else 4))
            o = [(4, m0)]
            for i in range(3):
                o.append(self.VM(f"buffer_load_dwordx4 v{V_KD+i}, s[{srd}:{srd+3}], s{so} offen offset:{1024*i}{self.nt()} lds", tag))
            o.append((4, f"s_add_u32 s{so}, s{so}, {PAGE}"))
            return o
        if vq is None:
            vq = dma_group("K") + dma_group("V")
        else:
            vq = [x for w in vq for x in (dma_group(w) if isinstance(w, str) else w)]
        if self.opt.get("nodma"): vq = []
        pinA = {}; pinB = {}
        if not odd and not last:
            if not czero:
                pinA[0] = [(4, f"s_sub_u32 s{S_DV}, s{S_PB}, s{S_PA}")] + [(4, f"v_add_u32 v{V_VA+i}, s{S_DV}, v{V_VA+i}") for i in range(4)]
            pinB[0] = [(4, f"s_sub_u32 s{S_DK}, s{S_PC}, s{S_PB}")] + [(4, f"v_add_u32 v{V_KA+i}, s{S_DK}, v{V_KA+i}") for i in range(2)]
        BAR = 12 - D - 2
        VSP = self.opt.get("VSP", 6)
        st_ = {"vm": -9, "m": 0}
        CSL = self.opt.get("CSL", 0); CMAX = self.opt.get("CMAX", 4)
        def run_phase(steps, mk, queue, pins, qmin, off, vq):
            carry = 0
            for st in range(steps):
                gs = off + st
                if a.wait_lg(("f", base + min(gs + (G - 1 - (gs % G)), nk + nv - 1))): carry -= 4
                rd = reads_for(gs + D) if (do_pv or gs + D < nk) else []
                for t in range(4):
                    a.e(mk(st, t))
                    st_["m"] += 1
                    carry += BUD
                    if t % 2 == 0 and t // 2 < len(rd): rd[t // 2](); carry -= 4
                    if st in pins:
                        while pins[st] and (carry > 0 or t == 3):
                            cst, it = pins[st].pop(0); self.emit(it); carry -= cst
                    while vq and carry > 0:
                        cst, it = vq[0]
                        isvm = isinstance(it, tuple) and it[0] == "VM"
                        if isvm and st_["m"] - st_["vm"] < VSP: break
                        vq.pop(0); self.emit(it); carry -= cst
                        if isvm:
                            st_["vm"] = st_["m"]; break
                        if it.startswith("s_add_u32 m0") or it.startswith("s_mov_b32 m0"):
                            st_["vm"] = max(st_["vm"], st_["m"] - VSP + 1)
                            break
                    while queue and 4 * st + t >= qmin and carry >= queue[0][0] - CSL:
                        cst, it = queue.pop(0); self.emit(it); carry -= cst
                    if carry > CMAX: carry = CMAX
            self.emit_all(queue); queue.clear()
        def mk_qk(st, t):
            kh, ds = divmod(st, 6)
            acc = vr(self.S(nxt, t, 4 * kh), 4)
            c0 = "0" if (safe or first) else vr(V_CI + t * 4, 4)
            return f"v_mfma_f32_16x16x32_bf16 {acc}, {ar(self.slot(base+st),4)}, {vr(V_Q+t*24+ds*4,4)}, {c0 if ds == 0 else acc}"
        def mk_pv(st, t):
            acc = ar(self.oacc(st, t), 4)
            return f"v_mfma_f32_16x16x32_bf16 {acc}, {ar(self.slot(base+nk+st),4)}, {vr(V_P+t*4,4)}, {'0' if czero else acc}"
        a.c(f"---- iter site {site} phase A")
        if do_qk:
            run_phase(12, mk_qk, qa, pinA, 0, 0, vq)
        else:
            for st in range(D):
                for r in reads_for(st): r()
            k = 0
            for cst, it in qa:
                self.emit(it); k += 1
                if vq and k % 3 == 0:
                    self.emit(vq.pop(0)[1])
            a.e("s_nop 1")
        if not (last and not safe):
            for c_, it in vq:
                self.emit(it)
                if isinstance(it, str) and " m0," in it: a.e("s_nop 0")
            vq = []
        a.c(f"---- iter site {site} phase B")
        if do_pv:
            if not last:
                if j is None: bar = [(4, f"s_waitcnt vmcnt(18)"), (4, "s_barrier")]
                else: bar = [(4, ("WVM", [("K", j + 2), ("V", j + 1)])), (4, "s_barrier")]
                pinB.setdefault(BAR, []); pinB[BAR] = pinB[BAR] + bar
            elif not safe:
                pinB[0] = [(4, f"v_add_f32 v{V_TMP}, v{V_L}, v{V_L+1}"), (4, f"v_add_f32 v{V_TMP}, v{V_TMP}, v{V_L+2}"), (4, f"v_add_f32 v{V_TMP}, v{V_TMP}, v{V_L+3}"),
                           (4, f"v_cmp_nlt_f32 vcc, v{V_TMP}, v{V_THR}"),
                           (4, "s_cmp_lg_u64 vcc, 0"),
                           (4, f"s_cselect_b32 s{S_T0}, 1, 0"),
                           (4, f"v_mov_b32 v{V_TMP+7}, s{S_T0}"),
                           (4, ("DS", f"ds_write_b32 v{V_FL}, v{V_TMP+7}", "fl"))]
                pinB[5] = [(4, ("WLG", "fl")), (4, "s_barrier"), (4, f"v_mov_b32 v{V_TMP+6}, {PAGE}"),
                           (4, ("DS", f"ds_read_b128 v[{V_TMP+1}:{V_TMP+4}], v{V_TMP+6}", "fl"))]
            run_phase(12, mk_pv, qb, pinB, (8 if safe else self.opt.get("QMIN", 0)), nk, vq)
            self.emit_all(vq)
            if safe and not last:
                a.e(f"s_cmp_lg_u32 s{S_FLAG}, 0")
                a.e(f"s_mov_b32 s{S_SITE}, {site}")
                a.e(f"s_cbranch_scc1 RESCALE")
                a.label(f"RESC_RET_{site}")
        else:
            a.e("s_nop 7"); a.e("s_nop 3")
            a.wait_vm([("K", 1), ("V", 0)])
            a.e("s_barrier")
            for st in range(nk, nk + D):
                for r in reads_for(st): r()
            self.emit_all(qb)
        self.fc = base + nk + nv
        if self.opt.get("novalu") and not first:
            a.lines[self._it0:] = [l for l in a.lines[self._it0:] if not any(l.strip().startswith(x) for x in ("v_exp", "v_add_f32", "v_cvt"))]

    def stamp(self, i):
        if not self.opt.get("stamp"): return
        a = self.a
        a.e("s_memrealtime s[76:77]")
        a.e("s_memtime s[100:101]")
        a.e("s_waitcnt lgkmcnt(0)"); a.lg = []
        a.e(f"s_cmp_eq_u32 s{S_ROUND}, 0")
        a.e(f"s_cselect_b32 s{80+i}, s76, s{80+i}")
        a.e(f"s_cselect_b32 s{85+i}, s{85+i}, s76")
        a.e(f"s_cselect_b32 s{90+i}, s100, s{90+i}")
        a.e(f"s_cselect_b32 s{95+i}, s{95+i}, s100")

    def stamp_store(self):
        if not self.opt.get("stamp"): return
        a = self.a
        a.e(f"s_lshl_b32 s{S_T0}, s2, 9")
        a.e(f"s_lshl_b32 s{S_T1}, s{S_WAVE}, 7")
        a.e(f"s_add_u32 s{S_T0}, s{S_T0}, s{S_T1}")
        a.e(f"s_add_u32 s{S_T0}, s{S_T0}, {64<<20}")
        a.e("v_mov_b32 v1, 0")
        for i in range(20):
            a.e(f"v_mov_b32 v2, s{80+i}")
            a.e(f"buffer_store_dword v2, v1, s[{S_WS}:{S_WS+3}], s{S_T0} offen offset:{4*i}")
            a.e("s_waitcnt vmcnt(0)")

    def rotate(self):
        a = self.a
        a.e(f"s_mov_b32 s{S_T0}, s{S_PA}")
        a.e(f"s_mov_b32 s{S_PA}, s{S_PB}")
        a.e(f"s_mov_b32 s{S_PB}, s{S_PC}")
        a.e(f"s_mov_b32 s{S_PC}, s{S_T0}")

    def epilogue(self):
        a = self.a
        a.c("---- epilogue")
        for sw in ("v_permlane32_swap_b32", "v_permlane16_swap_b32"):
            for t in range(4): a.e(f"v_mov_b32 v{V_TMP+t}, v{V_L+t}")
            a.e("s_nop 0")
            for t in range(4): a.e(f"{sw} v{V_L+t}, v{V_TMP+t}")
            for t in range(4): a.e(f"v_add_f32 v{V_L+t}, v{V_L+t}, v{V_TMP+t}")
        for t in range(4): a.e(f"v_rcp_f32 v{V_L+t}, v{V_L+t}")
        a.e("s_nop 3")
        k = 0
        for t in range(4):
            for m6 in range(6):
                tb = V_S + (k % 4) * 16; k += 1
                for e in range(2):
                    for m in range(4):
                        a.e(f"v_accvgpr_read_b32 v{tb+4*e+m}, a{self.oacc(2*m6+e, t)+m}")
                for m in range(8):
                    a.e(f"v_mul_f32 v{tb+m}, v{tb+m}, v{V_L+t}")
                for m in range(4):
                    a.e(f"v_cvt_pk_bf16_f32 v{tb+8+m}, v{tb+2*m}, v{tb+2*m+1}")
                if m6 % 4 == 0:
                    a.e(f"s_add_u32 s{S_T2}, s{S_WSOFF}, {t*196608 + (m6>>2)*4096}")
                a.vmem(f"buffer_store_dwordx4 {vr(tb+8,4)}, v{V_L16}, s[{S_WS}:{S_WS+3}], s{S_T2} offen offset:{(m6&3)*1024}", "ST")

    def rare_blocks(self, sites):
        a = self.a
        for lab, t, ret in self.rare:
            a.label(lab)
            mx = f"v{V_MX+t}"; tmp = f"v{V_TMP+t}"
            self.emit_all(self.xreduce(V_MX + t, V_TMP + t, "v_max_f32"))
            a.e(f"v_max_f32 {mx}, {mx}, v{V_M+t}")
            a.e(f"v_sub_f32 {tmp}, v{V_M+t}, {mx}")
            a.e(f"v_exp_f32 v{V_AL+t}, {tmp}")
            a.e(f"v_mov_b32 v{V_M+t}, {mx}")
            a.e(f"v_sub_f32 v{V_NEGM+t}, 0, {mx}")
            a.e(f"v_add_f32 v{V_THR+t}, 0x{f32bits(THR_T):08x}, {mx}")
            a.e(f"s_mov_b32 s{S_FLAG}, 1")
            a.e(f"s_branch {ret}")
        a.label("RESCALE")
        a.e("s_nop 15")
        for t in range(4):
            a.e(f"v_mul_f32 v{V_L+t}, v{V_L+t}, v{V_AL+t}")
            for d0 in range(0, 12, 2):
                regs = [self.oacc(d0 + e, t) + m for e in range(2) for m in range(4)]
                for m, r in enumerate(regs): a.e(f"v_accvgpr_read_b32 v{V_TMP+m}, a{r}")
                for m, r in enumerate(regs): a.e(f"v_mul_f32 v{V_TMP+m}, v{V_TMP+m}, v{V_AL+t}")
                for m, r in enumerate(regs): a.e(f"v_accvgpr_write_b32 a{r}, v{V_TMP+m}")
            a.e(f"v_mov_b32 v{V_AL+t}, 1.0")
        a.e(f"s_mov_b32 s{S_FLAG}, 0")
        a.e("s_nop 1")
        for s in sites[:-1]:
            a.e(f"s_cmp_eq_u32 s{S_SITE}, {s}")
            a.e(f"s_cbranch_scc1 RESC_RET_{s}")
        a.e(f"s_branch RESC_RET_{sites[-1]}")

    def dump_q(self):
        a = self.a
        for t in range(2):
            for ks in range(12):
                if ks % 4 == 0:
                    a.e(f"s_add_u32 s{S_T2}, s{S_WSOFF}, {t*393216 + (ks>>2)*4096}")
                a.vmem(f"buffer_store_dwordx4 {vr(V_Q+t*48+ks*4,4)}, v{V_L16}, s[{S_WS}:{S_WS+3}], s{S_T2} offen offset:{(ks&3)*1024}", "ST")

    def align_fc(self):
        while self.fc % RING: self.fc += 1

    def build(self, name):
        a = self.a
        D = self.opt.get("D", 5)
        a.raw(f".globl {name}\n.p2align 8\n.type {name},@function")
        a.label(name)
        i0 = len(a.lines)
        self.setup()
        a.label("K1_COLD")
        self.cold_loads()
        cold_vm = list(a.vm)
        a.label("K1_ITEM")
        self.stamp(0)
        self.item_setup()
        self.phase_q()
        self.stamp(1)
        for w, tl in ((("V", 1),) if self.opt.get("early", 1) else (("K", 2), ("K", 3), ("V", 1), ("K", 4), ("V", 2))):
            self.emit_all(self.g_kv_static(w, tl))
        self.align_fc()
        for st in range(D): self.k_read(self.fc + st, st, 0)
        self.q_convert()
        self.iteration(True, 9, first=True, j=-1)
        self.iteration(False, 0, czero=True, j=0)
        self.rotate()
        self.stamp(2)
        a.e(f"s_mov_b32 s{S_CNT}, 12")
        a.raw(".p2align 3")
        a.label("K1_LOOP")
        l0 = len(a.lines)
        self.iteration(True, 1)
        self.iteration(False, 2)
        self.rotate()
        a.e(f"s_sub_u32 s{S_CNT}, s{S_CNT}, 1")
        a.e(f"s_cmp_lg_u32 s{S_CNT}, 0")
        a.e("s_cbranch_scc1 K1_LOOP")
        l1 = len(a.lines)
        a.vm = []
        for jj in (22, 23, 24):
            a.vm += [("K", jj + 6)] * 3 + [("V", jj + 4)] * 3
        S4 = lambda ls: [(4, l) for l in ls]
        self.iteration(True, 3, j=25, vq=["K", "V", S4(self.srd_xw("next"))])
        self.iteration(False, 4, j=26, vq=["V", self.g_wq(0)])
        self.rotate()
        self.iteration(True, 5, j=27, vq=["V", self.g_wq(1)])
        self.iteration(False, 6, j=28, vq=[self.g_wq(2), S4(self.srd_kv("K", "next")), self.g_touch_x()])
        self.rotate()
        self.iteration(True, 7, j=29, vq=[self.g_wq(3), self.g_touch_w(), self.g_touch_o()])
        self.iteration(False, 8, j=30, vq=[self.g_x(0, 0), self.g_x(0, 1)])
        self.rotate()
        a.e(f"v_mov_b32 v{V_THR}, 0x{f32bits(LMAX):08x}")
        self.iteration(True, 10, j=31, last=True, vq=[self.g_x(1, 0), self.g_x(1, 1), self.g_kv_static("K", 0, tag=("K", 0))])
        a.wait_lg("fl")
        a.e(f"v_or3_b32 v{V_TMP}, v{V_TMP+1}, v{V_TMP+2}, v{V_TMP+3}")
        a.e(f"v_or_b32 v{V_TMP}, v{V_TMP}, v{V_TMP+4}")
        a.e("s_nop 0")
        a.e(f"v_readfirstlane_b32 s{S_T0}, v{V_TMP}")
        a.e("s_nop 3")
        if self.opt.get("force_safe"): a.e(f"s_mov_b32 s{S_T0}, 1")
        a.e(f"s_cmp_lg_u32 s{S_T0}, 0")
        a.e("s_cbranch_scc1 K1_SAFE")
        a.e("s_nop 3")
        self.stamp(3)
        self.addr_reset()
        a.vm = [t for t in a.vm if t[0] in ("W", "X", "T") or t == ("K", 0)]
        self.epilogue()
        assert a.vm == cold_vm[-len(a.vm):], (a.vm, cold_vm)
        self.stamp(4)
        self.paths["fast"] = a.lines[i0:l1] + a.lines[l0:]
        a.e(f"s_add_u32 s{S_ROUND}, s{S_ROUND}, 1")
        a.e(f"s_cmp_lt_u32 s{S_ROUND}, 2")
        a.e("s_cbranch_scc1 K1_ITEM")
        a.label("K1_FIN")
        a.e("s_waitcnt vmcnt(0)")
        self.stamp_store()
        a.label("K1_END")
        a.e("s_endpgm")
        a.label("K1_SAFE")
        s0 = len(a.lines)
        a.e("s_waitcnt vmcnt(0) lgkmcnt(0)"); a.vm = []; a.lg = []
        a.e("s_barrier")
        self.addr_reset()
        for l in self.srd_kv("K", "cur") + self.srd_kv("V", "cur"): a.e(l)
        self.ring_init()
        for w, tl in (("K", 0), ("K", 1), ("K", 2), ("V", 0), ("K", 3), ("V", 1), ("K", 4), ("V", 2)):
            self.emit_all(self.g_kv_static(w, tl))
        a.wait_vm([("K", 0)])
        a.e("s_barrier")
        self.align_fc()
        for st in range(D): self.k_read(self.fc + st, st, 0)
        self.iteration(True, 19, safe=True, first=True, j=-1)
        self.iteration(False, 20, safe=True, czero=True, j=0)
        self.rotate()
        a.e(f"s_mov_b32 s{S_CNT}, 15")
        a.label("K1_SLOOP")
        sl0 = len(a.lines)
        self.iteration(True, 21, safe=True)
        self.iteration(False, 22, safe=True)
        self.rotate()
        a.e(f"s_sub_u32 s{S_CNT}, s{S_CNT}, 1")
        a.e(f"s_cmp_lg_u32 s{S_CNT}, 0")
        a.e("s_cbranch_scc1 K1_SLOOP")
        sl1 = len(a.lines)
        self.iteration(True, 23, safe=True, last=True, vq=[])
        a.e("s_nop 15")
        self.addr_reset()
        self.epilogue()
        a.e("s_waitcnt vmcnt(0) lgkmcnt(0)"); a.vm = []; a.lg = []
        a.e("s_barrier")
        self.paths["safe"] = a.lines[s0:sl1] + a.lines[sl0:]
        a.e(f"s_add_u32 s{S_ROUND}, s{S_ROUND}, 1")
        a.e(f"s_cmp_lt_u32 s{S_ROUND}, 2")
        a.e("s_cbranch_scc1 K1_COLD")
        a.e("s_branch K1_FIN")
        self.rare_blocks([20, 21, 22])

KD = """.amdhsa_kernel {name}
  .amdhsa_next_free_vgpr {vgpr}
  .amdhsa_next_free_sgpr {sgpr}
  .amdhsa_accum_offset {acc}
  .amdhsa_group_segment_fixed_size 0
  .amdhsa_kernarg_size 104
  .amdhsa_user_sgpr_count 2
  .amdhsa_user_sgpr_kernarg_segment_ptr 1
  .amdhsa_system_sgpr_workgroup_id_x 1
.end_amdhsa_kernel
"""
```

```python
from asmlib import *
import math, struct

def f32bits(x):
    return struct.unpack("<I", struct.pack("<f", x))[0]

S_X, S_WQ, S_K, S_V, S_WS, S_NUL = 8, 12, 16, 20, 24, 4
S_WAVE, S_W3072, S_ROUND, S_B, S_H, S_C = 54, 55, 56, 57, 58, 59
S_KOFF, S_VOFF, S_PA, S_PB, S_PC, S_CNT, S_FLAG, S_SITE = 60, 61, 62, 63, 64, 65, 66, 67
S_T0, S_T1, S_XOFF, S_WQOFF, S_WSOFF, S_T2, S_T3 = 68, 69, 70, 71, 72, 73, 74
S_XM0, S_ITOFF, S_DK, S_DV = 75, 78, 79, 3
S_TW, S_TO1, S_TO2 = 48, 52, 53
V_TMP = 1
V_XD = 9
V_KA, V_VA = 17, 21
V_KD = 25
V_L16 = 28
V_M, V_L, V_AL, V_MX, V_NEGM, V_THR = 29, 31, 33, 35, 37, 39
V_WD = 41
V_FL = 44
V_TO1, V_TO2 = 45, 46
V_P = 48
V_CI = 64
V_XA = 64
V_WA = 68
V_S = 96
V_Q = 160
A_O = 0
A_F = 192
A_ST = 240
RING = 12
PAGE = 12288
WPAGE = [4, 6, 5, 7, 3]
CSC = (192 ** -0.5) * math.log2(math.e)
THR_T = 8.0
LMAX = 65536.0

class K1:
    def __init__(self, a, opt):
        self.a = a
        self.opt = opt
        self.fc = 0
        self.rare = []
        self.paths = {}

    def setup(self):
        a = self.a
        T = 100
        a.e("s_cmp_ge_u32 s2, 256")
        a.e("s_cbranch_scc1 K1_END")
        a.e(f"s_load_dwordx16 s[28:43], s[0:1], 0")
        a.e(f"s_load_dwordx8 s[44:51], s[0:1], 64")
        a.e(f"s_load_dwordx2 s[52:53], s[0:1], 96")
        a.e("v_and_b32 v101, 63, v0")
        a.e("v_lshrrev_b32 v102, 6, v0")
        a.e("v_and_b32 v103, 31, v101")
        a.e(f"v_readfirstlane_b32 s{S_WAVE}, v102")
        if self.opt.get("xcc", 1):
            a.e("s_waitcnt lgkmcnt(0)")
            claim_issue(a, 50, S_WAVE, S_X, S_KOFF, S_VOFF, 1, 2)
        a.e("v_lshrrev_b32 v104, 5, v101")
        a.e("v_bfe_u32 v105, v103, 1, 1")
        a.e("v_lshlrev_b32 v105, 2, v105")
        a.e("v_bfe_u32 v106, v103, 2, 2")
        a.e("v_or_b32 v105, v105, v106")
        a.e(f"s_mul_i32 s{S_W3072}, s{S_WAVE}, 3072")
        a.e(f"s_mov_b32 s{S_C}, 0x{f32bits(CSC):08x}")
        a.e(f"v_lshlrev_b32 v{V_L16}, 4, v101")
        a.e(f"v_lshlrev_b32 v{V_TO1}, 7, v101")
        a.e("v_min_u32 v107, 47, v101")
        a.e("v_mul_u32_u24 v108, 2731, v107"); a.e("v_lshrrev_b32 v108, 16, v108"); a.e("v_mul_u32_u24 v108, 9216, v108")
        a.e(f"v_lshl_add_u32 v{V_TO2}, v107, 7, v108")
        a.e(f"v_lshlrev_b32 v{V_FL}, 2, v102")
        a.e(f"v_add_u32 v{V_FL}, {PAGE}, v{V_FL}")
        a.e("v_mul_u32_u24 v107, 384, v103")
        for i in range(4):
            a.e(f"v_add_u32 v108, {2*i}, v104")
            a.e("v_xor_b32 v108, v108, v105")
            a.e(f"v_lshl_add_u32 v{V_KA+i}, v108, 4, v107")
        a.e(f"s_lshl_b32 s{S_T0}, s{S_WAVE}, 13")
        a.e(f"s_add_u32 s{S_XM0}, s{S_T0}, 98304")
        a.e("v_lshlrev_b32 v107, 7, v103")
        a.e(f"v_add_u32 v107, s{S_XM0}, v107")
        for i in range(4):
            a.e(f"v_add_u32 v108, {2*i}, v104")
            a.e("v_xor_b32 v108, v108, v105")
            a.e(f"v_lshl_add_u32 v{V_XA+i}, v108, 4, v107")
        a.e("v_bfe_u32 v109, v101, 2, 2")
        a.e("v_bfe_u32 v110, v101, 4, 1")
        a.e("v_and_b32 v111, 1, v101")
        a.e("v_lshl_or_b32 v110, v110, 1, v111")
        a.e("v_bfe_u32 v111, v101, 1, 1")
        a.e("v_lshlrev_b32 v111, 3, v111")
        a.e("v_lshrrev_b32 v112, 1, v109")
        a.e("v_lshlrev_b32 v112, 2, v112")
        for dtb in range(2):
            for i in range(2):
                a.e(f"v_lshl_add_u32 v113, v104, 2, v109")
                a.e(f"v_add_u32 v113, {8*i}, v113")
                a.e("v_mul_u32_u24 v113, 384, v113")
                a.e(f"v_or_b32 v114, {2*i}, v112")
                a.e("v_or_b32 v114, v114, v104")
                a.e(f"v_add_u32 v115, {4*dtb}, v110")
                a.e("v_xor_b32 v114, v114, v115")
                a.e("v_lshl_add_u32 v113, v114, 4, v113")
                a.e(f"v_add_u32 v{V_VA+2*dtb+i}, v113, v111")
                a.e(f"v_lshl_add_u32 v113, v104, 3, v109")
                a.e(f"v_add_u32 v113, {4*i}, v113")
                a.e("v_mul_u32_u24 v113, 384, v113")
                a.e(f"v_lshl_or_b32 v114, v104, 1, v112")
                a.e(f"v_or_b32 v114, {i}, v114")
                a.e("v_xor_b32 v114, v114, v115")
                a.e("v_lshl_add_u32 v113, v114, 4, v113")
                a.e("v_add_u32 v113, v113, v111")
                a.e(f"v_add_u32 v{V_WA+2*dtb+i}, {3*PAGE}, v113")
        a.e(f"s_mul_i32 s{S_T0}, s{S_WAVE}, 192")
        for i in range(3):
            a.e(f"v_add_u32 v107, s{S_T0}, v101")
            if i: a.e(f"v_add_u32 v107, {64*i}, v107")
            a.e("v_mul_u32_u24 v108, 2731, v107")
            a.e("v_lshrrev_b32 v108, 16, v108")
            a.e("v_bfe_u32 v113, v108, 1, 1")
            a.e("v_lshlrev_b32 v113, 2, v113")
            a.e("v_bfe_u32 v114, v108, 2, 2")
            a.e("v_or_b32 v113, v113, v114")
            a.e("v_lshlrev_b32 v113, 4, v113")
            a.e("v_lshlrev_b32 v114, 4, v107")
            a.e("v_xor_b32 v114, v114, v113")
            a.e(f"v_subrev_u32 v{V_KD+i}, {1024*i}, v114")
            a.e("v_mul_u32_u24 v115, 11904, v108")
            a.e(f"v_add_u32 v{V_WD+i}, v115, v{V_KD+i}")
        a.e(f"s_mul_i32 s{S_T0}, s{S_WAVE}, {64*1280}")
        for i in range(8):
            a.e("v_lshrrev_b32 v107, 3, v101")
            a.e(f"v_add_u32 v107, {8*i}, v107")
            a.e("v_bfe_u32 v113, v107, 1, 1")
            a.e("v_lshlrev_b32 v113, 2, v113")
            a.e("v_bfe_u32 v114, v107, 2, 2")
            a.e("v_or_b32 v113, v113, v114")
            a.e("v_and_b32 v114, 7, v101")
            a.e("v_xor_b32 v113, v113, v114")
            a.e("v_mul_u32_u24 v107, 1280, v107")
            a.e("v_lshl_add_u32 v107, v113, 4, v107")
            a.e(f"v_add_u32 v107, s{S_T0}, v107")
            a.e(f"v_subrev_u32 v{V_XD+i}, {1024*(i&3)}, v107")
        for i in range(8):
            a.e(f"v_accvgpr_write_b32 a{A_ST+i}, v{V_XA+i}")
        a.e("s_waitcnt lgkmcnt(0)")
        if self.opt.get("xcc", 1):
            claim_finish(a, "K1", S_WAVE, 2, S_X, S_KOFF, S_VOFF, 1, 2, 3, lds_off=PAGE)
        a.e(f"s_mov_b32 s{S_WS}, s52")
        a.e(f"s_mov_b32 s{S_WS+1}, s53")
        a.e(f"s_mov_b32 s{S_WS+2}, {439353344}")
        a.e(f"s_mov_b32 s{S_WS+3}, 0x00020000")
        a.e(f"s_mov_b32 s{S_NUL}, s52")
        a.e(f"s_mov_b32 s{S_NUL+1}, s53")
        a.e(f"s_mov_b32 s{S_NUL+2}, 0")
        a.e(f"s_mov_b32 s{S_NUL+3}, 0x00020000")
        a.e("v_min_u32 v107, 15, v101")
        a.e("v_lshlrev_b32 v107, 2, v107")
        a.e("v_mov_b32 v108, 0")
        a.e(f"s_lshl_b32 s{S_T0}, s2, 6")
        a.e(f"s_add_u32 s{S_T0}, s{S_T0}, {52<<20}")
        a.e(f"buffer_store_dword v108, v107, s[{S_WS}:{S_WS+3}], s{S_T0} offen")
        a.e(f"s_and_b32 s{S_T0}, s2, 1")
        a.e(f"s_lshl_b32 s{S_T0}, s{S_T0}, 2")
        a.e(f"s_bfe_u32 s{S_T1}, s2, 0x20003")
        a.e(f"s_or_b32 s{S_B}, s{S_T0}, s{S_T1}")
        a.e(f"s_bfe_u32 s{S_T0}, s2, 0x20001")
        a.e(f"s_lshl_b32 s{S_T0}, s{S_T0}, 3")
        a.e(f"s_lshr_b32 s{S_T1}, s2, 5")
        a.e(f"s_or_b32 s{S_H}, s{S_T0}, s{S_T1}")
        a.e(f"s_mov_b32 s{S_ROUND}, 0")
        a.e(f"s_lshl_b32 s{S_T0}, s{S_B}, 5")
        a.e(f"s_add_u32 s{S_T0}, s{S_T0}, s{S_H}")
        a.e(f"s_mul_i32 s{S_ITOFF}, s{S_T0}, 393216")
        a.e(f"s_mul_i32 s{S_XOFF}, s{S_B}, 327680")
        a.e(f"s_mul_i32 s{S_WQOFF}, s{S_H}, 384")
        for s in (S_X, S_WQ, S_K, S_V):
            a.e(f"s_mov_b32 s{s+3}, 0x00020000")

    def srd_xw(self, mode):
        o = [f"s_cmp_eq_u32 s{S_ROUND}, 0"]
        if mode == "cur":
            o += [f"s_cselect_b32 s{S_X}, s28, s38", f"s_cselect_b32 s{S_X+1}, s29, s39", f"s_mov_b32 s{S_X+2}, {8*256*640*2}",
                  f"s_cselect_b32 s{S_WQ}, s34, s44", f"s_cselect_b32 s{S_WQ+1}, s35, s45", f"s_mov_b32 s{S_WQ+2}, {640*6144*2}"]
        else:
            o += [f"s_mov_b32 s{S_X}, s38", f"s_mov_b32 s{S_X+1}, s39", f"s_cselect_b32 s{S_X+2}, {8*256*640*2}, 0",
                  f"s_mov_b32 s{S_WQ}, s44", f"s_mov_b32 s{S_WQ+1}, s45", f"s_cselect_b32 s{S_WQ+2}, {640*6144*2}, 0"]
        return o
    def srd_kv(self, which, mode):
        s, pa, pb = (S_K, 30, 40) if which == "K" else (S_V, 32, 42)
        o = [f"s_cmp_eq_u32 s{S_ROUND}, 0"]
        if mode == "cur":
            o += [f"s_cselect_b32 s{s}, s{pa}, s{pb}", f"s_cselect_b32 s{s+1}, s{pa+1}, s{pb+1}", f"s_mov_b32 s{s+2}, 393216"]
            o += [f"s_add_u32 s{s}, s{s}, s{S_ITOFF}", f"s_addc_u32 s{s+1}, s{s+1}, 0"]
        else:
            o += [f"s_cselect_b32 s{s+2}, 393216, 0", f"s_add_u32 s{s}, s{pb}, s{S_ITOFF}", f"s_addc_u32 s{s+1}, s{pb+1}, 0"]
        return o

    def item_setup(self):
        a = self.a
        for l in self.srd_kv("V", "cur"): a.e(l)
        a.e(f"s_mul_i32 s{S_WSOFF}, s{S_ROUND}, 25165824")
        a.e(f"s_lshl_b32 s{S_T0}, s{S_B}, 3")
        a.e(f"s_lshl_b32 s{S_T1}, s{S_WAVE}, 1")
        a.e(f"s_add_u32 s{S_T0}, s{S_T0}, s{S_T1}")
        a.e(f"s_mul_i32 s{S_T0}, s{S_T0}, 393216")
        a.e(f"s_add_u32 s{S_WSOFF}, s{S_WSOFF}, s{S_T0}")
        a.e(f"s_mul_i32 s{S_T0}, s{S_H}, 12288")
        a.e(f"s_add_u32 s{S_WSOFF}, s{S_WSOFF}, s{S_T0}")
        self.ring_init()
        for i in range(8):
            a.e(f"v_accvgpr_read_b32 v{V_XA+i}, a{A_ST+i}")

    def ring_init(self):
        a = self.a
        a.e(f"s_add_u32 s{S_PA}, s{S_W3072}, 98304")
        a.e(f"s_mov_b32 s{S_PB}, s{S_W3072}")
        a.e(f"s_add_u32 s{S_PC}, s{S_W3072}, 49152")
        a.e(f"s_mov_b32 s{S_FLAG}, 0")
        a.e(f"s_mov_b32 s{S_KOFF}, {5*PAGE}")
        a.e(f"s_mov_b32 s{S_VOFF}, {3*PAGE}")

    def addr_reset(self):
        a = self.a
        for i in range(4):
            a.e(f"v_subrev_u32 v{V_KA+i}, 49152, v{V_KA+i}")

    def nt(self):
        return " nt" if self.opt.get("nt", 1) else ""
    def VM(self, s, tag):
        return (self.opt.get("DMAC", 8), ("VM", s, tag))

    def g_kv_static(self, which, tile, tag=None):
        srd = S_K if which == "K" else S_V
        page = 2 * (tile % 6) + (0 if which == "K" else 1)
        o = [(4, f"s_add_u32 m0, s{S_W3072}, {page*PAGE}"), (4, f"s_mov_b32 s{S_T2}, {tile*PAGE}")]
        for i in range(3):
            o.append(self.VM(f"buffer_load_dwordx4 v{V_KD+i}, s[{srd}:{srd+3}], s{S_T2} offen offset:{1024*i}{self.nt()} lds", tag or (which, tile)))
        return o
    def g_wq(self, u):
        o = [(4, f"s_add_u32 m0, s{S_W3072}, {WPAGE[u % 5]*PAGE}"), (4, f"s_add_u32 s{S_T2}, s{S_WQOFF}, {u*32*12288}")]
        for i in range(3):
            o.append(self.VM(f"buffer_load_dwordx4 v{V_WD+i}, s[{S_WQ}:{S_WQ+3}], s{S_T2} offen offset:{1024*i} lds", ("W", u)))
        return o
    def g_x(self, c, hlf):
        o = [(4, f"s_add_u32 m0, s{S_XM0}, {(c&1)*32768 + hlf*4096}"), (4, f"s_add_u32 s{S_T3}, s{S_XOFF}, {c*128}")]
        for i in range(4):
            o.append(self.VM(f"buffer_load_dwordx4 v{V_XD+4*hlf+i}, s[{S_X}:{S_X+3}], s{S_T3} offen offset:{1024*i} lds", ("X", c)))
        return o
    def emit(self, it):
        a = self.a
        if isinstance(it, tuple):
            if it[0] == "VM": a.vmem(it[1], it[2])
            elif it[0] == "DS": a.ds(it[1], it[2])
            elif it[0] == "WVM": a.wait_vm(it[1])
            elif it[0] == "WLG": a.wait_lg(it[1])
            elif it[0] == "FN": it[1]()
        else:
            a.e(it)
    def emit_all(self, items):
        for c, it in items: self.emit(it)

    def xreg(self, c, t, s):
        return V_S + (c & 1) * 32 + t * 16 + s * 4
    def x_read(self, c, n):
        t, s = n >> 2, n & 3
        self.a.ds(f"ds_read_b128 {vr(self.xreg(c,t,s),4)}, v{V_XA+s} offset:{(c&1)*32768 + t*4096}", ("xr", c))
    def slot(self, n):
        return A_F + 4 * (n % RING)

    def g_touch_x(self):
        T = V_TMP
        S4 = lambda ls: [(4, l) for l in ls]
        o = S4([f"s_lshr_b32 s{S_T0}, s2, 3", f"s_lshl_b32 s{S_T0}, s{S_T0}, 2", f"s_add_u32 s{S_T0}, s{S_T0}, s{S_WAVE}",
                f"s_and_b32 s{S_T1}, s2, 1", f"s_mul_i32 s{S_T1}, s{S_T1}, 1310720",
                f"s_mul_i32 s{S_T0}, s{S_T0}, 10240", f"s_add_u32 s{S_T1}, s{S_T1}, s{S_T0}"])
        o.append(self.VM(f"buffer_load_dword v47, v{V_TO1}, s[{S_X}:{S_X+3}], s{S_T1} offen", "T"))
        o += S4([f"v_min_u32 v{T+3}, {15*128}, v{V_TO1}", f"s_add_u32 s{S_T1}, s{S_T1}, 8192"])
        o.append(self.VM(f"buffer_load_dword v47, v{T+3}, s[{S_X}:{S_X+3}], s{S_T1} offen", "T"))
        return o

    def g_touch_w(self):
        T = V_TMP
        S4 = lambda ls: [(4, l) for l in ls]
        o = S4([f"s_lshr_b32 s{S_T0}, s2, 3", f"s_lshl_b32 s{S_T0}, s{S_T0}, 2", f"s_add_u32 s{S_T0}, s{S_T0}, s{S_WAVE}",
                f"s_bfe_u32 s{S_T1}, s2, 0x20001", f"s_mul_i32 s{S_T1}, s{S_T1}, 3072",
                f"s_mul_i32 s{S_T0}, s{S_T0}, {5*12288}", f"s_add_u32 s{S_T1}, s{S_T1}, s{S_T0}"])
        o.append(self.VM(f"buffer_load_dword v47, v{V_TO2}, s[{S_WQ}:{S_WQ+3}], s{S_T1} offen", "T"))
        o += S4([f"s_add_u32 s{S_T1}, s{S_T1}, 24576"])
        o.append(self.VM(f"buffer_load_dword v47, v{V_TO2}, s[{S_WQ}:{S_WQ+3}], s{S_T1} offen", "T"))
        o += S4([f"v_min_u32 v{T+3}, {23*128}, v{V_TO1}", f"s_add_u32 s{S_T1}, s{S_T1}, 24576"])
        o.append(self.VM(f"buffer_load_dword v47, v{T+3}, s[{S_WQ}:{S_WQ+3}], s{S_T1} offen", "T"))
        return o

    def g_touch_o(self, cold=False):
        T = V_TMP
        S4 = lambda ls: [(4, l) for l in ls]
        if cold:
            o = S4([f"s_mov_b32 s{S_NUL+2}, 0", f"s_mov_b32 s{S_T1}, 0"])
        else:
            o = S4([f"s_cmp_lt_u32 s2, 128", f"s_cselect_b32 s{S_NUL}, s36, s46", f"s_cselect_b32 s{S_NUL+1}, s37, s47",
                    f"s_cmp_eq_u32 s{S_ROUND}, 0", f"s_cselect_b32 s{S_NUL+2}, 0, {6144*640*2}",
                    f"s_and_b32 s{S_T0}, s2, 127", f"s_lshl_b32 s{S_T0}, s{S_T0}, 2", f"s_add_u32 s{S_T0}, s{S_T0}, s{S_WAVE}", f"s_mul_i32 s{S_T1}, s{S_T0}, 15360"])
        o.append(self.VM(f"buffer_load_dword v47, v{V_TO1}, s[{S_NUL}:{S_NUL+3}], s{S_T1} offen", "T"))
        o += S4([f"v_min_u32 v{T+3}, {55*128}, v{V_TO1}", f"s_add_u32 s{S_T1}, s{S_T1}, 8192"])
        o.append(self.VM(f"buffer_load_dword v47, v{T+3}, s[{S_NUL}:{S_NUL+3}], s{S_T1} offen", "T"))
        return o

    def cold_loads(self):
        a = self.a
        for l in self.srd_xw("cur") + self.srd_kv("K", "cur"): a.e(l)
        for u in range(3): self.emit_all(self.g_wq(u))
        self.emit_all(self.g_touch_x())
        self.emit_all(self.g_wq(3))
        self.emit_all(self.g_touch_w())
        self.emit_all(self.g_touch_o(cold=True))
        for c in range(2):
            for h in range(2): self.emit_all(self.g_x(c, h))
        self.emit_all(self.g_kv_static("K", 0))
        for i in range(24):
            a.vmem(f"buffer_load_dword v47, v{V_L16}, s[{S_NUL}:{S_NUL+3}], 0 offen", "ST")

    def phase_q(self):
        a = self.a
        D = self.opt.get("DQ", 5)
        a.c("---- phase Q")
        q0 = len(a.lines)
        a.wait_vm([("X", 0), ("W", 0)])
        a.e("s_barrier")
        for n in range(8): self.x_read(0, n)
        base = self.fc
        def wread(g, i):
            u, r = divmod(g, 12); s, dt = divmod(r, 6)
            off = (WPAGE[u % 5] - 3) * PAGE + s * 6144 + (dt >> 1) * 128
            a.ds(f"ds_read_b64_tr_b16 {ar(self.slot(base+g)+2*i,2)}, v{V_WA+2*(dt&1)+i} offset:{off}", ("wf", g))
        for g in range(D):
            wread(g, 0); wread(g, 1)
        queue = self.g_kv_static("K", 1) + self.g_kv_static("V", 0)
        NG = 240
        last_vm = -9
        for g in range(NG):
            u, r = divmod(g, 12); s, dt = divmod(r, 6)
            c = u >> 1; sidx = 2 * (u & 1) + s
            if r == 0 and (u & 1) == 0:
                a.wait_lg(("xr", c))
                if c + 2 < 10: queue += self.g_x(c + 2, 0) + self.g_x(c + 2, 1)
            a.wait_lg(("wf", g))
            for t in range(2):
                acc = ar(A_O + (t * 6 + dt) * 16, 16)
                cin = "0" if (u == 0 and s == 0) else acc
                a.e(f"v_mfma_f32_32x32x16_bf16 {acc}, {ar(self.slot(base+g),4)}, {vr(self.xreg(c,t,sidx),4)}, {cin}")
                if g + D < NG: wread(g + D, t)
                m = 2 * g + t
                while queue:
                    cst, it = queue[0]
                    if isinstance(it, tuple) and it[0] == "VM":
                        if m - last_vm < self.opt.get("QSP", 2): break
                        last_vm = m
                        self.emit(it); queue.pop(0)
                        break
                    self.emit(it); queue.pop(0)
            if r == 12 - D - 1 and u + 1 < 20:
                a.wait_vm([("W", u + 1)])
                a.e("s_barrier")
                if u + 4 < 20: queue += self.g_wq(u + 4)
                elif self.opt.get("early", 1):
                    if u == 16: queue += self.g_kv_static("K", 2)
                    if u == 17: queue += self.g_kv_static("K", 3)
                    if u == 18: queue += self.g_kv_static("V", 2) + self.g_kv_static("K", 4)
            if (u & 1) == 1 and c + 1 < 10:
                if r == 1: a.wait_vm([("X", c + 1)])
                if 1 <= r <= 8: self.x_read(c + 1, r - 1)
        self.emit_all(queue)
        self.fc = base + NG
        a.e("s_barrier")
        if self.opt.get("qnodma"):
            a.lines[q0:] = [l for l in a.lines[q0:] if not l.strip().startswith("buffer_load")]

    def q_convert(self):
        a = self.a
        a.e("s_nop 15")
        for t in range(2):
            for ks in range(12):
                dt, hlf = ks >> 1, ks & 1
                for m in range(8):
                    a.e(f"v_accvgpr_read_b32 v{V_TMP+m}, a{A_O+(t*6+dt)*16+8*hlf+m}")
                if not self.opt.get("dump_q"):
                    for m in range(8):
                        a.e(f"v_mul_f32 v{V_TMP+m}, s{S_C}, v{V_TMP+m}")
                for m in range(4):
                    a.e(f"v_cvt_pk_bf16_f32 v{V_Q+t*48+ks*4+m}, v{V_TMP+2*m}, v{V_TMP+2*m+1}")

    def S(self, p, t, e): return V_S + p * 32 + t * 16 + e

    def maxchain(self, p, t):
        o = []
        mx = f"v{V_MX+t}"
        s = lambda e: f"v{self.S(p,t,e)}"
        o.append((4, f"v_max3_f32 {mx}, {s(0)}, {s(1)}, {s(2)}"))
        for e in range(3, 15, 2):
            o.append((4, f"v_max3_f32 {mx}, {mx}, {s(e)}, {s(e+1)}"))
        o.append((4, f"v_max_f32 {mx}, {mx}, {s(15)}"))
        return o

    def q_max(self, p, t, site, first, safe):
        o = self.maxchain(p, t)
        mx = f"v{V_MX+t}"
        if first:
            tmp = f"v{V_TMP+t}"
            o.append((4, f"v_mov_b32 {tmp}, {mx}"))
            o.append((8, "s_nop 1"))
            o.append((4, f"v_permlane32_swap_b32 {mx}, {tmp}"))
            o.append((4, f"v_max_f32 v{V_M+t}, {mx}, {tmp}"))
            o.append((4, f"v_sub_f32 v{V_NEGM+t}, 0, v{V_M+t}"))
            o.append((4, f"v_mov_b32 v{V_L+t}, 0"))
            if safe:
                o.append((4, f"v_add_f32 v{V_THR+t}, 0x{f32bits(THR_T):08x}, v{V_M+t}"))
                o.append((4, f"v_mov_b32 v{V_AL+t}, 1.0"))
            else:
                for e in range(16):
                    o.append((4, f"v_mov_b32 v{V_CI+t*16+e}, v{V_NEGM+t}"))
        else:
            lab = f"RARE_{site}_{t}"; ret = f"RET_{site}_{t}"
            o.append((4, f"v_cmp_gt_f32 vcc, {mx}, v{V_THR+t}"))
            o.append((4, f"s_cbranch_vccnz {lab}\n{ret}:"))
            self.rare.append((lab, t, ret))
        return o

    def sub(self, p, t, e):
        return (4, f"v_add_f32 v{self.S(p,t,e)}, v{self.S(p,t,e)}, v{V_NEGM+t}")
    def exp(self, p, t, e):
        return (8, f"v_exp_f32 v{self.S(p,t,e)}, v{self.S(p,t,e)}")
    def add(self, p, t, e):
        return (4, f"v_add_f32 v{V_L+t}, v{V_L+t}, v{self.S(p,t,e)}")
    def cvt(self, p, t, m):
        return (4, f"v_cvt_pk_bf16_f32 v{V_P+t*8+m}, v{self.S(p,t,2*m)}, v{self.S(p,t,2*m+1)}")

    @staticmethod
    def inter(x, y, ny=1, lag=0):
        o = []; y = list(y)
        for k, it in enumerate(x):
            o.append(it)
            if k >= lag:
                for _ in range(ny):
                    if y: o.append(y.pop(0))
        return o + y

    def QB(self, p, site, first, safe):
        if safe or first:
            o = self.q_max(p, 0, site, first, safe) + self.q_max(p, 1, site, first, safe)
            o += [self.sub(p, 0, e) for e in range(8)]
            o += self.inter([self.exp(p, 0, e) for e in range(8)], [self.sub(p, 1, e) for e in range(8)])
            o += self.inter([self.exp(p, 1, e) for e in range(8)], [self.sub(p, 0, e) for e in range(8, 16)])
            o += [self.sub(p, 1, e) for e in range(8, 16)]
            if not safe:
                o += [self.add(p, 0, e) for e in range(8)] + [self.add(p, 1, e) for e in range(8)]
            return o
        ex = [self.exp(p, 0, e) for e in range(8)] + [self.exp(p, 1, e) for e in range(8)]
        ad = [self.add(p, 0, e) for e in range(8)] + [self.add(p, 1, e) for e in range(8)]
        return self.inter(ex, ad, 1, 1)

    def QA(self, p, safe):
        c1 = [self.cvt(p, 0, m) for m in range(4)] + [self.cvt(p, 1, m) for m in range(4)]
        if safe:
            a1 = [self.add(p, 0, e) for e in range(8)] + [self.add(p, 1, e) for e in range(8)]
            o = self.inter([self.exp(p, 0, e) for e in range(8, 16)], c1 + a1[:4], 2)
            o += self.inter([self.exp(p, 1, e) for e in range(8, 16)], a1[4:] + [self.cvt(p, 0, m) for m in range(4, 8)], 2)
            o += [self.add(p, 0, e) for e in range(8, 16)]
            o += [self.cvt(p, 1, m) for m in range(4, 8)]
            o += [self.add(p, 1, e) for e in range(8, 16)]
            return o
        o = self.inter([self.exp(p, 0, e) for e in range(8, 16)], c1, 1)
        y = []
        for m in range(4): y += [self.add(p, 0, 8 + 2 * m), self.add(p, 0, 9 + 2 * m), self.cvt(p, 0, 4 + m)]
        o += self.inter([self.exp(p, 1, e) for e in range(8, 16)], y, 2)
        for m in range(4): o += [self.add(p, 1, 8 + 2 * m), self.add(p, 1, 9 + 2 * m), self.cvt(p, 1, 4 + m)]
        return o

    def k_read(self, n, ks, kc):
        self.a.ds(f"ds_read_b128 {ar(self.slot(n),4)}, v{V_KA+(ks&3)} offset:{kc + (ks>>2)*128}", ("f", n))
    def v_read(self, n, idx, vc, i):
        ks2, dt = divmod(idx, 6)
        self.a.ds(f"ds_read_b64_tr_b16 {ar(self.slot(n)+2*i,2)}, v{V_VA+2*(dt&1)+i} offset:{vc + PAGE + ks2*6144 + (dt>>1)*128}", ("f", n))

    def iteration(self, odd, site, safe=False, first=False, czero=False, last=False, j=None, vq=None):
        a = self.a
        self._it0 = len(a.lines)
        D = self.opt.get("D", 5)
        G = self.opt.get("G", 2)
        BUD = self.opt.get("BUD", 24)
        do_qk = not last; do_pv = not first
        cur = 1 if odd else 0; nxt = 1 - cur
        kc = 0 if odd else 24576
        kc_next = 24576 if odd else 0
        vc = 24576 if odd else 0
        base = self.fc
        nk = 12 if do_qk else 0
        nv = 12 if do_pv else 0
        nolook = last or (j == 30)
        def reads_for(step):
            n = base + step
            if step < nk: return [lambda: self.k_read(n, step, kc)]
            if step < nk + nv:
                return [lambda: self.v_read(n, step - nk, vc, 0), lambda: self.v_read(n, step - nk, vc, 1)]
            if nolook: return []
            return [lambda: self.k_read(n, step - nk - nv, kc_next)]
        qa = [] if first else self.QA(cur, safe)
        qb = [] if last else self.QB(nxt, site, first, safe)
        def dma_group(which):
            if which == "K":
                m0 = f"s_add_u32 m0, s{S_PA}, 24576" if odd else f"s_mov_b32 m0, s{S_PB}"
                srd, so = S_K, S_KOFF
            else:
                m0 = f"s_add_u32 m0, s{S_PC}, 36864" if odd else f"s_add_u32 m0, s{S_PA}, 12288"
                srd, so = S_V, S_VOFF
            tag = which if j is None else (which, j + (6 if which == "K" else 4))
            o = [(4, m0)]
            for i in range(3):
                o.append(self.VM(f"buffer_load_dwordx4 v{V_KD+i}, s[{srd}:{srd+3}], s{so} offen offset:{1024*i}{self.nt()} lds", tag))
            o.append((4, f"s_add_u32 s{so}, s{so}, {PAGE}"))
            return o
        if vq is None:
            vq = dma_group("K") + dma_group("V")
        else:
            vq = [x for w in vq for x in (dma_group(w) if isinstance(w, str) else w)]
        if self.opt.get("nodma"): vq = []
        pinA = {}; pinB = {}
        if not odd and not last:
            if not czero:
                pinA[0] = [(4, f"s_sub_u32 s{S_DV}, s{S_PB}, s{S_PA}")] + [(4, f"v_add_u32 v{V_VA+i}, s{S_DV}, v{V_VA+i}") for i in range(4)]
            pinB[0] = [(4, f"s_sub_u32 s{S_DK}, s{S_PC}, s{S_PB}")] + [(4, f"v_add_u32 v{V_KA+i}, s{S_DK}, v{V_KA+i}") for i in range(4)]
        BAR = 12 - D - 2
        VSP = self.opt.get("VSP", 3)
        st_ = {"vm": -9, "m": 0}
        def run_phase(steps, mk, queue, pins, qmin, off, vq):
            carry = 0
            for st in range(steps):
                gs = off + st
                if a.wait_lg(("f", base + min(gs + (G - 1 - (gs % G)), nk + nv - 1))): carry -= 4
                rd = reads_for(gs + D) if (do_pv or gs + D < nk) else []
                for t in range(2):
                    a.e(mk(st, t))
                    st_["m"] += 1
                    carry += BUD
                    if t < len(rd): rd[t](); carry -= 4
                    if t == 0 and st in pins:
                        for cst, it in pins[st]:
                            self.emit(it); carry -= cst
                    while vq:
                        cst, it = vq[0]
                        isvm = isinstance(it, tuple) and it[0] == "VM"
                        if isvm and st_["m"] - st_["vm"] < VSP: break
                        vq.pop(0); self.emit(it); carry -= cst
                        if isvm:
                            st_["vm"] = st_["m"]; break
                        if it.startswith("s_add_u32 m0") or it.startswith("s_mov_b32 m0"):
                            st_["vm"] = max(st_["vm"], st_["m"] - VSP + 1)
                            break
                    while queue and 2 * st + t >= qmin and carry >= queue[0][0]:
                        cst, it = queue.pop(0); self.emit(it); carry -= cst
                    if carry > 8: carry = 8
            self.emit_all(queue); queue.clear()
        def mk_qk(st, t):
            acc = vr(self.S(nxt, t, 0), 16)
            c0 = "0" if (safe or first) else vr(V_CI + t * 16, 16)
            return f"v_mfma_f32_32x32x16_bf16 {acc}, {ar(self.slot(base+st),4)}, {vr(V_Q+t*48+st*4,4)}, {c0 if st == 0 else acc}"
        def mk_pv(st, t):
            ks2, dt = divmod(st, 6)
            acc = ar(A_O + (t * 6 + dt) * 16, 16)
            return f"v_mfma_f32_32x32x16_bf16 {acc}, {ar(self.slot(base+nk+st),4)}, {vr(V_P+t*8+ks2*4,4)}, {'0' if (czero and ks2 == 0) else acc}"
        a.c(f"---- iter site {site} phase A")
        if do_qk:
            run_phase(12, mk_qk, qa, pinA, 0, 0, vq)
        else:
            for st in range(D):
                for r in reads_for(st): r()
            k = 0
            for cst, it in qa:
                self.emit(it); k += 1
                if vq and k % 3 == 0:
                    self.emit(vq.pop(0)[1])
            a.e("s_nop 1")
        if not (last and not safe):
            for c_, it in vq:
                self.emit(it)
                if isinstance(it, str) and " m0," in it: a.e("s_nop 0")
            vq = []
        a.c(f"---- iter site {site} phase B")
        if do_pv:
            if not last:
                if j is None: bar = [(4, f"s_waitcnt vmcnt(18)"), (4, "s_barrier")]
                else: bar = [(4, ("WVM", [("K", j + 2), ("V", j + 1)])), (4, "s_barrier")]
                pinB.setdefault(BAR, []); pinB[BAR] = pinB[BAR] + bar
            elif not safe:
                pinB[0] = [(4, f"v_add_f32 v{V_TMP}, v{V_L}, v{V_L+1}"),
                           (4, f"v_cmp_nlt_f32 vcc, v{V_TMP}, v{V_THR}"),
                           (4, "s_cmp_lg_u64 vcc, 0"),
                           (4, f"s_cselect_b32 s{S_T0}, 1, 0"),
                           (4, f"v_mov_b32 v{V_TMP+7}, s{S_T0}"),
                           (4, ("DS", f"ds_write_b32 v{V_FL}, v{V_TMP+7}", "fl"))]
                pinB[5] = [(4, ("WLG", "fl")), (4, "s_barrier"), (4, f"v_mov_b32 v{V_TMP+6}, {PAGE}"),
                           (4, ("DS", f"ds_read_b128 v[{V_TMP+1}:{V_TMP+4}], v{V_TMP+6}", "fl"))]
            run_phase(12, mk_pv, qb, pinB, self.opt.get("QMIN", 4), nk, vq)
            self.emit_all(vq)
            if safe and not last:
                a.e(f"s_cmp_lg_u32 s{S_FLAG}, 0")
                a.e(f"s_mov_b32 s{S_SITE}, {site}")
                a.e(f"s_cbranch_scc1 RESCALE")
                a.label(f"RESC_RET_{site}")
        else:
            a.e("s_nop 7"); a.e("s_nop 3")
            a.wait_vm([("K", 1), ("V", 0)])
            a.e("s_barrier")
            for st in range(nk, nk + D):
                for r in reads_for(st): r()
            self.emit_all(qb)
        self.fc = base + nk + nv
        if self.opt.get("novalu") and not first:
            a.lines[self._it0:] = [l for l in a.lines[self._it0:] if not any(l.strip().startswith(x) for x in ("v_exp", "v_add_f32", "v_cvt"))]

    def stamp(self, i):
        if not self.opt.get("stamp"): return
        a = self.a
        a.e("s_memrealtime s[76:77]")
        a.e("s_memtime s[100:101]")
        a.e("s_waitcnt lgkmcnt(0)"); a.lg = []
        a.e(f"s_cmp_eq_u32 s{S_ROUND}, 0")
        a.e(f"s_cselect_b32 s{80+i}, s76, s{80+i}")
        a.e(f"s_cselect_b32 s{85+i}, s{85+i}, s76")
        a.e(f"s_cselect_b32 s{90+i}, s100, s{90+i}")
        a.e(f"s_cselect_b32 s{95+i}, s{95+i}, s100")

    def stamp_store(self):
        if not self.opt.get("stamp"): return
        a = self.a
        a.e(f"s_lshl_b32 s{S_T0}, s2, 9")
        a.e(f"s_lshl_b32 s{S_T1}, s{S_WAVE}, 7")
        a.e(f"s_add_u32 s{S_T0}, s{S_T0}, s{S_T1}")
        a.e(f"s_add_u32 s{S_T0}, s{S_T0}, {64<<20}")
        a.e("v_mov_b32 v1, 0")
        for i in range(20):
            a.e(f"v_mov_b32 v2, s{80+i}")
            a.e(f"buffer_store_dword v2, v1, s[{S_WS}:{S_WS+3}], s{S_T0} offen offset:{4*i}")
            a.e("s_waitcnt vmcnt(0)")

    def rotate(self):
        a = self.a
        a.e(f"s_mov_b32 s{S_T0}, s{S_PA}")
        a.e(f"s_mov_b32 s{S_PA}, s{S_PB}")
        a.e(f"s_mov_b32 s{S_PB}, s{S_PC}")
        a.e(f"s_mov_b32 s{S_PC}, s{S_T0}")

    def epilogue(self):
        a = self.a
        a.c("---- epilogue")
        for t in range(2):
            a.e(f"v_mov_b32 v{V_TMP+t}, v{V_L+t}")
        a.e("s_nop 1")
        for t in range(2):
            a.e(f"v_permlane32_swap_b32 v{V_L+t}, v{V_TMP+t}")
        for t in range(2):
            a.e(f"v_add_f32 v{V_L+t}, v{V_L+t}, v{V_TMP+t}")
        for t in range(2):
            a.e(f"v_rcp_f32 v{V_L+t}, v{V_L+t}")
        a.e("s_nop 7")
        k = 0
        for t in range(2):
            for ks in range(12):
                dt, hlf = ks >> 1, ks & 1
                tb = V_S + (k % 4) * 16; k += 1
                for m in range(8):
                    a.e(f"v_accvgpr_read_b32 v{tb+m}, a{A_O+(t*6+dt)*16+8*hlf+m}")
                for m in range(8):
                    a.e(f"v_mul_f32 v{tb+m}, v{tb+m}, v{V_L+t}")
                for m in range(4):
                    a.e(f"v_cvt_pk_bf16_f32 v{tb+8+m}, v{tb+2*m}, v{tb+2*m+1}")
                if ks % 4 == 0:
                    a.e(f"s_add_u32 s{S_T2}, s{S_WSOFF}, {t*393216 + (ks>>2)*4096}")
                a.vmem(f"buffer_store_dwordx4 {vr(tb+8,4)}, v{V_L16}, s[{S_WS}:{S_WS+3}], s{S_T2} offen offset:{(ks&3)*1024}{self.opt.get('ost','')}", "ST")

    def rare_blocks(self, sites):
        a = self.a
        for lab, t, ret in self.rare:
            a.label(lab)
            mx = f"v{V_MX+t}"; tmp = f"v{V_TMP+t}"
            a.e(f"v_mov_b32 {tmp}, {mx}")
            a.e("s_nop 1")
            a.e(f"v_permlane32_swap_b32 {mx}, {tmp}")
            a.e(f"v_max3_f32 {mx}, {mx}, {tmp}, v{V_M+t}")
            a.e(f"v_sub_f32 {tmp}, v{V_M+t}, {mx}")
            a.e(f"v_exp_f32 v{V_AL+t}, {tmp}")
            a.e(f"v_mov_b32 v{V_M+t}, {mx}")
            a.e(f"v_sub_f32 v{V_NEGM+t}, 0, {mx}")
            a.e(f"v_add_f32 v{V_THR+t}, 0x{f32bits(THR_T):08x}, {mx}")
            a.e(f"s_mov_b32 s{S_FLAG}, 1")
            a.e(f"s_branch {ret}")
        a.label("RESCALE")
        a.e("s_nop 15")
        for t in range(2):
            a.e(f"v_mul_f32 v{V_L+t}, v{V_L+t}, v{V_AL+t}")
            for r0 in range(0, 96, 8):
                for m in range(8): a.e(f"v_accvgpr_read_b32 v{V_TMP+m}, a{A_O+t*96+r0+m}")
                for m in range(8): a.e(f"v_mul_f32 v{V_TMP+m}, v{V_TMP+m}, v{V_AL+t}")
                for m in range(8): a.e(f"v_accvgpr_write_b32 a{A_O+t*96+r0+m}, v{V_TMP+m}")
            a.e(f"v_mov_b32 v{V_AL+t}, 1.0")
        a.e(f"s_mov_b32 s{S_FLAG}, 0")
        a.e("s_nop 1")
        for s in sites[:-1]:
            a.e(f"s_cmp_eq_u32 s{S_SITE}, {s}")
            a.e(f"s_cbranch_scc1 RESC_RET_{s}")
        a.e(f"s_branch RESC_RET_{sites[-1]}")

    def dump_q(self):
        a = self.a
        for t in range(2):
            for ks in range(12):
                if ks % 4 == 0:
                    a.e(f"s_add_u32 s{S_T2}, s{S_WSOFF}, {t*393216 + (ks>>2)*4096}")
                a.vmem(f"buffer_store_dwordx4 {vr(V_Q+t*48+ks*4,4)}, v{V_L16}, s[{S_WS}:{S_WS+3}], s{S_T2} offen offset:{(ks&3)*1024}", "ST")

    def align_fc(self):
        while self.fc % RING: self.fc += 1

    def build(self, name):
        a = self.a
        D = self.opt.get("D", 5)
        a.raw(f".globl {name}\n.p2align 8\n.type {name},@function")
        a.label(name)
        self.setup()
        a.label("K1_COLD")
        i0 = len(a.lines)
        self.cold_loads()
        cold_vm = list(a.vm)
        a.label("K1_ITEM")
        self.stamp(0)
        self.item_setup()
        self.phase_q()
        self.stamp(1)
        for w, tl in ((("V", 1),) if self.opt.get("early", 1) else (("K", 2), ("K", 3), ("V", 1), ("K", 4), ("V", 2))):
            self.emit_all(self.g_kv_static(w, tl))
        self.align_fc()
        for st in range(D): self.k_read(self.fc + st, st, 0)
        self.q_convert()
        self.iteration(True, 9, first=True, j=-1)
        self.iteration(False, 0, czero=True, j=0)
        self.rotate()
        self.stamp(2)
        a.e(f"s_mov_b32 s{S_CNT}, 12")
        a.raw(".p2align 3")
        a.label("K1_LOOP")
        l0 = len(a.lines)
        self.iteration(True, 1)
        self.iteration(False, 2)
        self.rotate()
        a.e(f"s_sub_u32 s{S_CNT}, s{S_CNT}, 1")
        a.e(f"s_cmp_lg_u32 s{S_CNT}, 0")
        a.e("s_cbranch_scc1 K1_LOOP")
        l1 = len(a.lines)
        a.vm = []
        for jj in (22, 23, 24):
            a.vm += [("K", jj + 6)] * 3 + [("V", jj + 4)] * 3
        S4 = lambda ls: [(4, l) for l in ls]
        self.iteration(True, 3, j=25, vq=["K", "V", S4(self.srd_xw("next"))])
        self.iteration(False, 4, j=26, vq=["V", self.g_wq(0)])
        self.rotate()
        self.iteration(True, 5, j=27, vq=["V", self.g_wq(1)])
        self.iteration(False, 6, j=28, vq=[self.g_wq(2), S4(self.srd_kv("K", "next")), self.g_touch_x()])
        self.rotate()
        self.iteration(True, 7, j=29, vq=[self.g_wq(3), self.g_touch_w(), self.g_touch_o()])
        self.iteration(False, 8, j=30, vq=[self.g_x(0, 0), self.g_x(0, 1)])
        self.rotate()
        a.e(f"v_mov_b32 v{V_THR}, 0x{f32bits(LMAX):08x}")
        self.iteration(True, 10, j=31, last=True, vq=[self.g_x(1, 0), self.g_x(1, 1), self.g_kv_static("K", 0, tag=("K", 0))])
        a.wait_lg("fl")
        a.e(f"v_or3_b32 v{V_TMP}, v{V_TMP+1}, v{V_TMP+2}, v{V_TMP+3}")
        a.e(f"v_or_b32 v{V_TMP}, v{V_TMP}, v{V_TMP+4}")
        a.e("s_nop 0")
        a.e(f"v_readfirstlane_b32 s{S_T0}, v{V_TMP}")
        a.e("s_nop 3")
        if self.opt.get("force_safe"): a.e(f"s_mov_b32 s{S_T0}, 1")
        a.e(f"s_cmp_lg_u32 s{S_T0}, 0")
        a.e("s_cbranch_scc1 K1_SAFE")
        a.e("s_nop 3")
        self.stamp(3)
        self.addr_reset()
        a.vm = [t for t in a.vm if t[0] in ("W", "X", "T") or t == ("K", 0)]
        self.epilogue()
        assert a.vm == cold_vm[-len(a.vm):], (a.vm, cold_vm)
        self.stamp(4)
        self.paths["fast"] = a.lines[i0:l1] + a.lines[l0:]
        a.e(f"s_add_u32 s{S_ROUND}, s{S_ROUND}, 1")
        a.e(f"s_cmp_lt_u32 s{S_ROUND}, 2")
        a.e("s_cbranch_scc1 K1_ITEM")
        a.label("K1_FIN")
        a.e("s_waitcnt vmcnt(0)")
        self.stamp_store()
        a.label("K1_END")
        a.e("s_endpgm")
        a.label("K1_SAFE")
        s0 = len(a.lines)
        a.e("s_waitcnt vmcnt(0) lgkmcnt(0)"); a.vm = []; a.lg = []
        a.e("s_barrier")
        self.addr_reset()
        for l in self.srd_kv("K", "cur") + self.srd_kv("V", "cur"): a.e(l)
        self.ring_init()
        for w, tl in (("K", 0), ("K", 1), ("K", 2), ("V", 0), ("K", 3), ("V", 1), ("K", 4), ("V", 2)):
            self.emit_all(self.g_kv_static(w, tl))
        a.wait_vm([("K", 0)])
        a.e("s_barrier")
        self.align_fc()
        for st in range(D): self.k_read(self.fc + st, st, 0)
        self.iteration(True, 19, safe=True, first=True, j=-1)
        self.iteration(False, 20, safe=True, czero=True, j=0)
        self.rotate()
        a.e(f"s_mov_b32 s{S_CNT}, 15")
        a.label("K1_SLOOP")
        sl0 = len(a.lines)
        self.iteration(True, 21, safe=True)
        self.iteration(False, 22, safe=True)
        self.rotate()
        a.e(f"s_sub_u32 s{S_CNT}, s{S_CNT}, 1")
        a.e(f"s_cmp_lg_u32 s{S_CNT}, 0")
        a.e("s_cbranch_scc1 K1_SLOOP")
        sl1 = len(a.lines)
        self.iteration(True, 23, safe=True, last=True, vq=[])
        a.e("s_nop 15")
        self.addr_reset()
        self.epilogue()
        a.e("s_waitcnt vmcnt(0) lgkmcnt(0)"); a.vm = []; a.lg = []
        a.e("s_barrier")
        self.paths["safe"] = a.lines[s0:sl1] + a.lines[sl0:]
        a.e(f"s_add_u32 s{S_ROUND}, s{S_ROUND}, 1")
        a.e(f"s_cmp_lt_u32 s{S_ROUND}, 2")
        a.e("s_cbranch_scc1 K1_COLD")
        a.e("s_branch K1_FIN")
        self.rare_blocks([20, 21, 22])

KD = """.amdhsa_kernel {name}
  .amdhsa_next_free_vgpr {vgpr}
  .amdhsa_next_free_sgpr {sgpr}
  .amdhsa_accum_offset {acc}
  .amdhsa_group_segment_fixed_size 0
  .amdhsa_kernarg_size 104
  .amdhsa_user_sgpr_count 2
  .amdhsa_user_sgpr_kernarg_segment_ptr 1
  .amdhsa_system_sgpr_workgroup_id_x 1
.end_amdhsa_kernel
"""
```

```python
from asmlib import *
import gen_k1

S_WO, S_WS, S_OUT, S_DBG = 8, 20, 24, 28
S_O = [12, 16, 72, 76+20]
S_WAVE, S_BLK, S_KQ, S_QB, S_NT, S_T0, S_T1, S_T2 = 54, 55, 56, 57, 58, 59, 60, 61
S_DOFF, S_OOFF, S_M0A, S_M0B, S_CNT, S_XW, S_XR, S_OUTOFF, S_CTR, S_SPIN = 62, 63, 64, 65, 66, 67, 68, 69, 70, 71
V_L16 = 8
V_WD = 10
V_WA = 16
V_OUT = 24
V_OF = 64
V_T = 104
A_ACC = 0
A_F = 160
RING = 10
UNIT = 20480
XBASE = 64 << 20
FBASE = 52 << 20
POL = ['', ' nt', ' sc0', ' sc1', ' sc0 sc1', ' sc0 nt', ' sc1 nt', ' sc0 sc1 nt']

class K2:
    def __init__(self, a, opt):
        self.a = a; self.opt = opt; self.paths = {}
        self.NU = opt.get('NU', 4); self.dq = []
        self.OR = opt.get("OR", 4); self.NS = opt.get("NS", 4)
        self.launch = f"; @launch kernel=oproj_kernel grid=(256,1,1) block=(256,1,1) lds={self.NS*UNIT}"
        self.kd = gen_k1.KD.format(name="oproj_kernel", vgpr=512, sgpr=102, acc=256)

    def slot(self, n): return A_F + 4 * (n % RING)
    def oreg(self, ks, t): return V_OF + (ks % self.OR) * 16 + t * 4
    def acc(self, nt, qt): return A_ACC + (qt * 10 + nt) * 4

    def setup(self):
        a = self.a
        a.e("s_cmp_ge_u32 s2, 256")
        a.e("s_cbranch_scc1 K2_END")
        a.e("s_load_dwordx2 s[32:33], s[0:1], 32")
        a.e("s_load_dwordx2 s[34:35], s[0:1], 72")
        a.e("s_load_dwordx4 s[36:39], s[0:1], 80")
        a.e("s_load_dwordx2 s[40:41], s[0:1], 96")
        a.e("v_and_b32 v1, 63, v0")
        a.e("v_lshrrev_b32 v2, 6, v0")
        a.e(f"v_lshlrev_b32 v{V_L16}, 4, v1")
        a.e(f"v_readfirstlane_b32 s{S_WAVE}, v2")
        if self.opt.get("xcc", 1):
            a.e("s_waitcnt lgkmcnt(0)")
            claim_issue(a, 38, S_WAVE, S_DBG, S_CNT, S_SPIN, 30, 31)
        a.e(f"s_mul_i32 s{S_T0}, s{S_WAVE}, 320")
        for i in range(5):
            a.e(f"v_add_u32 v3, s{S_T0}, v1")
            if i: a.e(f"v_add_u32 v3, {64*i}, v3")
            a.e("v_mul_u32_u24 v4, 3277, v3")
            a.e("v_lshrrev_b32 v4, 16, v4")
            a.e("v_bfe_u32 v5, v4, 2, 1")
            a.e("v_lshlrev_b32 v5, 5, v5")
            a.e("v_lshlrev_b32 v6, 4, v3")
            a.e("v_mul_u32_u24 v7, 320, v4")
            a.e("v_sub_u32 v6, v6, v7")
            a.e("v_xor_b32 v6, v6, v5")
            a.e("v_mul_u32_u24 v5, 1280, v4")
            a.e("v_add_u32 v5, v5, v6")
            a.e(f"v_subrev_u32 v{V_WD+i}, {1024*i if i < 4 else 0}, v5")
        a.e("v_lshrrev_b32 v3, 4, v1")
        a.e("v_bfe_u32 v4, v1, 2, 2")
        a.e("v_lshl_add_u32 v4, v3, 2, v4")
        a.e("v_mul_u32_u24 v4, 320, v4")
        a.e("v_and_b32 v5, 3, v1")
        a.e("v_lshl_add_u32 v4, v5, 3, v4")
        a.e("v_and_b32 v5, 1, v3")
        for b in range(2):
            a.e(f"v_xor_b32 v6, {b}, v5")
            a.e("v_lshl_add_u32 v6, v6, 5, v4")
            for sl in range(self.NS):
                a.e(f"v_add_u32 v{V_WA+2*sl+b}, {sl*UNIT}, v6")
        a.e("v_and_b32 v5, 15, v1")
        a.e("v_mul_u32_u24 v5, 2560, v5")
        a.e(f"v_lshl_add_u32 v{V_OUT}, v3, 3, v5")
        a.e("s_waitcnt lgkmcnt(0)")
        if self.opt.get("xcc", 1):
            claim_finish(a, "K2", S_WAVE, 2, S_DBG, S_CNT, S_SPIN, 30, 31, 32, lds_off=81916)
        a.e(f"s_bfe_u32 s{S_BLK}, s2, 0x10002")
        a.e(f"s_and_b32 s{S_KQ}, s2, 3")
        a.e(f"s_lshr_b32 s{S_QB}, s2, 5")
        a.e(f"s_bfe_u32 s{S_NT}, s2, 0x20003")
        a.e(f"s_cmp_eq_u32 s{S_BLK}, 0")
        a.e(f"s_cselect_b32 s{S_WO}, s32, s34")
        a.e(f"s_cselect_b32 s{S_WO+1}, s33, s35")
        a.e(f"s_mul_i32 s{S_T0}, s{S_KQ}, {1536*1280}")
        a.e(f"s_add_u32 s{S_WO}, s{S_WO}, s{S_T0}")
        a.e(f"s_addc_u32 s{S_WO+1}, s{S_WO+1}, 0")
        a.e(f"s_mov_b32 s{S_WO+2}, {1536*1280}")
        a.e(f"s_mov_b32 s{S_WO+3}, 0x00020000")
        a.e(f"s_mul_i32 s{S_T0}, s{S_BLK}, 25165824")
        a.e(f"s_lshl_b32 s{S_T1}, s{S_QB}, 4")
        a.e(f"s_lshl_b32 s{S_T2}, s{S_WAVE}, 2")
        a.e(f"s_add_u32 s{S_T1}, s{S_T1}, s{S_T2}")
        a.e(f"s_mul_i32 s{S_T1}, s{S_T1}, 196608")
        a.e(f"s_add_u32 s{S_T0}, s{S_T0}, s{S_T1}")
        a.e(f"s_mul_i32 s{S_T1}, s{S_KQ}, 49152")
        a.e(f"s_add_u32 s{S_T0}, s{S_T0}, s{S_T1}")
        for qt in range(4):
            if qt: a.e(f"s_add_u32 s{S_T0}, s{S_T0}, 196608")
            a.e(f"s_add_u32 s{S_O[qt]}, s40, s{S_T0}")
            a.e(f"s_addc_u32 s{S_O[qt]+1}, s41, 0")
            a.e(f"s_mov_b32 s{S_O[qt]+2}, 49152")
            a.e(f"s_mov_b32 s{S_O[qt]+3}, 0x00020000")
        a.e(f"s_mov_b32 s{S_WS}, s40"); a.e(f"s_mov_b32 s{S_WS+1}, s41")
        a.e(f"s_mov_b32 s{S_WS+2}, 439353344"); a.e(f"s_mov_b32 s{S_WS+3}, 0x00020000")
        a.e(f"s_mov_b32 s{S_OUT}, s36"); a.e(f"s_mov_b32 s{S_OUT+1}, s37")
        a.e(f"s_mov_b32 s{S_OUT+2}, {8*256*1280*2}"); a.e(f"s_mov_b32 s{S_OUT+3}, 0x00020000")
        a.e(f"s_mov_b32 s{S_DBG}, s38"); a.e(f"s_mov_b32 s{S_DBG+1}, s39")
        a.e(f"s_mov_b32 s{S_DBG+2}, 256"); a.e(f"s_mov_b32 s{S_DBG+3}, 0x00020000")
        a.e(f"s_mul_i32 s{S_DOFF}, s{S_NT}, 320")
        a.e(f"s_mov_b32 s{S_OOFF}, 0")
        a.e(f"s_mul_i32 s{S_M0A}, s{S_WAVE}, 5120")
        if self.opt.get("rot"):
            a.e(f"s_mul_i32 s{S_T0}, s{S_NT}, {self.opt.get('rn', 2)}")
            a.e(f"s_mul_i32 s{S_T1}, s{S_QB}, {self.opt.get('rq', 1)}")
            a.e(f"s_add_u32 s{S_T0}, s{S_T0}, s{S_T1}")
            a.e(f"s_lshl_b32 s{S_OOFF}, s{S_T0}, 12")
            a.e(f"s_mul_i32 s{S_T0}, s{S_T0}, 81920")
            a.e(f"s_add_u32 s{S_M0B}, s{S_DOFF}, s{S_T0}")
        a.e(f"s_lshl_b32 s{S_T0}, s{S_BLK}, 5")
        a.e(f"s_lshr_b32 s{S_T1}, s2, 3")
        a.e(f"s_add_u32 s{S_T0}, s{S_T0}, s{S_T1}")
        a.e(f"s_lshl_b32 s{S_CTR}, s{S_T0}, 8")
        a.e(f"s_lshl_b32 s{S_T1}, s{S_WAVE}, 2")
        a.e(f"s_add_u32 s{S_CTR}, s{S_CTR}, s{S_T1}")
        a.e(f"s_add_u32 s{S_CTR}, s{S_CTR}, {FBASE}")
        a.e(f"s_mul_i32 s{S_T0}, s{S_T0}, {16*20480}")
        a.e(f"s_mul_i32 s{S_T1}, s{S_WAVE}, 5120")
        a.e(f"s_add_u32 s{S_T0}, s{S_T0}, s{S_T1}")
        a.e(f"s_add_u32 s{S_XW}, s{S_T0}, {XBASE}")
        a.e(f"s_lshl_b32 s{S_T0}, s{S_QB}, 2")
        a.e(f"s_add_u32 s{S_T0}, s{S_T0}, s{S_WAVE}")
        a.e(f"s_mul_i32 s{S_OUTOFF}, s{S_T0}, {64*2560}")
        a.e(f"s_mul_i32 s{S_T0}, s{S_BLK}, 1280")
        a.e(f"s_add_u32 s{S_OUTOFF}, s{S_OUTOFF}, s{S_T0}")
        a.e(f"s_add_u32 s{S_OUTOFF}, s{S_OUTOFF}, s{S_DOFF}")
        a.e(f"s_mul_i32 s{S_T0}, s{S_KQ}, {16*2560}")
        a.e(f"s_add_u32 s{S_OUTOFF}, s{S_OUTOFF}, s{S_T0}")
        if self.opt.get("rot"):
            a.e(f"s_mov_b32 s{S_DOFF}, s{S_M0B}")

    def stamp(self, i):
        if not self.opt.get("stamp2"): return
        a = self.a
        a.e("s_memrealtime s[76:77]" if self.opt.get("stamp2") == 1 else "s_memtime s[76:77]")
        a.e("s_waitcnt lgkmcnt(0)"); a.lg = []
        a.e(f"s_mov_b32 s{80+i}, s76")

    def stamp_store(self):
        if not self.opt.get("stamp2"): return
        a = self.a
        a.e(f"s_lshl_b32 s{S_T0}, s2, 8")
        a.e(f"s_lshl_b32 s{S_T1}, s{S_WAVE}, 6")
        a.e(f"s_add_u32 s{S_T0}, s{S_T0}, s{S_T1}")
        a.e(f"s_add_u32 s{S_T0}, s{S_T0}, {60<<20}")
        a.e("v_mov_b32 v1, 0")
        for i in range(16):
            a.e(f"v_mov_b32 v2, s{80+i}")
            a.e(f"buffer_store_dword v2, v1, s[{S_WS}:{S_WS+3}], s{S_T0} offen offset:{4*i}")
            a.e("s_waitcnt vmcnt(0)")

    def dma_items(self, u):
        sl = (u % self.NS) * UNIT
        nt = POL[self.opt.get('ntw', 0)]
        o = [f"s_add_u32 m0, s{S_M0A}, {sl}", "s_nop 0"]
        for i in range(4):
            o.append(("VM", f"buffer_load_dwordx4 v{V_WD+i}, s[{S_WO}:{S_WO+3}], s{S_DOFF} offen offset:{1024*i}{nt} lds", ("W", u % self.NS)))
        o += [f"s_add_u32 m0, s{S_M0A}, {sl + 4096}", "s_nop 0"]
        o.append(("VM", f"buffer_load_dwordx4 v{V_WD+4}, s[{S_WO}:{S_WO+3}], s{S_DOFF} offen{nt} lds", ("W", u % self.NS)))
        o.append(f"s_add_u32 s{S_DOFF}, s{S_DOFF}, {64*1280}")
        return o

    def emit(self, it):
        if isinstance(it, tuple): self.a.vmem(it[1], it[2])
        else: self.a.e(it)

    def dma(self, u):
        for it in self.dma_items(u): self.emit(it)

    def oadv(self):
        self.a.e(f"s_add_u32 s{S_OOFF}, s{S_OOFF}, 4096")

    def oload(self, ks, t):
        srd = S_O[t]
        self.a.vmem(f"buffer_load_dwordx4 {vr(self.oreg(ks,t),4)}, v{V_L16}, s[{srd}:{srd+3}], s{S_OOFF} offen offset:{(ks&3)*1024}{POL[self.opt.get('nto', 0)]}", ("O", ks % self.OR, t))

    def wread(self, g, i):
        u, r = divmod(g, 20); s, nt = divmod(r, 10)
        self.a.ds(f"ds_read_b64_tr_b16 {ar(self.slot(g)+2*i,2)}, v{V_WA+2*(u%self.NS)+(nt&1)} offset:{s*10240 + i*5120 + (nt>>1)*64}", ("wf", g % (20*self.NU)))

    def body(self, first=False):
        a = self.a
        D = self.opt.get("D2", 5)
        G = self.opt.get("G2", 2)
        NT = 20 * self.NU
        for g in range(NT):
            u, r = divmod(g, 20); s, nt = divmod(r, 10)
            ks = 2 * u + s
            if nt == 0:
                a.wait_vm([("O", ks % self.OR, t) for t in range(4)])
            a.wait_lg(("wf", (g + (G - 1 - g % G)) % NT))
            for t in range(4):
                acc = ar(self.acc(nt, t), 4)
                cin = "0" if (first and ks == 0) else acc
                a.e(f"v_mfma_f32_16x16x32_bf16 {acc}, {ar(self.slot(g),4)}, {vr(self.oreg(ks,t),4)}, {cin}")
                if t % 2 == 0: self.wread(g + D, t // 2)
                if t == 1 and nt in (1, 3, 5, 7):
                    kn = ks - 1 + self.OR
                    if nt == 1 and (kn & 3) == 0: self.oadv()
                    self.oload(kn, nt >> 1)
                elif t == 1:
                    while self.dq:
                        it = self.dq.pop(0); self.emit(it)
                        if isinstance(it, tuple): break
            if r == 20 - D - 1:
                assert not [x for x in self.dq if isinstance(x, tuple)]
                for it in self.dq: self.emit(it)
                a.wait_vm([("W", (u + 1) % self.NS)])
                a.e("s_barrier")
                self.dq = self.dma_items(u + self.NS - 1)

    def build(self, name):
        a = self.a
        D = self.opt.get("D2", 5)
        a.raw(f".globl {name}\n.p2align 8\n.type {name},@function")
        a.label(name)
        i0 = len(a.lines)
        self.setup()
        self.stamp(0)
        assert self.OR == 4
        for u in range(self.NS - 1):
            self.dma(u)
            for t in range(4): self.oload(u, t)
        a.wait_vm([("W", 0)])
        a.e("s_barrier")
        self.stamp(1)
        for g in range(D):
            self.wread(g, 0); self.wread(g, 1)
        self.body(first=True)
        a.e(f"s_mov_b32 s{S_CNT}, {24 // self.NU - 1}")
        a.raw(".p2align 3")
        a.label("K2_LOOP")
        l0 = len(a.lines)
        self.body()
        t1 = a.lines[l0:]
        import copy
        b = Asm(); b.lg = list(a.lg); b.vm = list(a.vm)
        sa = self.a; self.a = b; dq = list(self.dq); self.body(); self.a = sa; self.dq = dq
        assert b.lines == t1, "K2 loop not steady"
        a.e(f"s_sub_u32 s{S_CNT}, s{S_CNT}, 1")
        a.e(f"s_cmp_lg_u32 s{S_CNT}, 0")
        a.e("s_cbranch_scc1 K2_LOOP")
        l1 = len(a.lines)
        if self.opt.get("k2nocomp"):
            a.lines[i0:] = [l for l in a.lines[i0:] if not (l.strip().startswith("v_mfma") or l.strip().startswith("ds_read"))]
        if self.opt.get("k2noo"):
            a.lines[i0:] = [l for l in a.lines[i0:] if not (l.strip().startswith("buffer_load") and " lds" not in l)]
        if self.opt.get("k2now"):
            a.lines[i0:] = [l for l in a.lines[i0:] if not (l.strip().startswith("buffer_load") and " lds" in l)]
        l1 = len(a.lines); l0 = a.lines.index("K2_LOOP:") + 1
        a.e("s_waitcnt vmcnt(0) lgkmcnt(0)"); a.vm = []; a.lg = []
        a.e("s_nop 15")
        self.stamp(2)
        a.e("v_mov_b32 v1, 0")
        a.e("v_mov_b32 v2, 1")
        for kq in range(4):
            if kq < 3:
                a.e(f"s_cmp_lg_u32 s{S_KQ}, {kq}")
                a.e(f"s_cbranch_scc1 K2_X{kq+1}")
            for d in range(1, 4):
                g = (kq + d) & 3
                tb = V_T + 40 + (d - 1) * 20
                for tl in range(10):
                    for m in range(4):
                        a.e(f"v_accvgpr_read_b32 v{4+m}, a{self.acc(tl, g)+m}")
                    a.e(f"v_cvt_pk_bf16_f32 v{tb+2*tl}, v4, v5")
                    a.e(f"v_cvt_pk_bf16_f32 v{tb+2*tl+1}, v6, v7")
                    if tl % 2 == 1:
                        k = tl // 2
                        if k in (0, 4): a.e(f"s_add_u32 s{S_T0}, s{S_XW}, {(g*4+kq)*20480 + (4096 if k == 4 else 0)}")
                        a.e(f"buffer_store_dwordx4 {vr(tb+4*k,4)}, v{V_L16}, s[{S_WS}:{S_WS+3}], s{S_T0} offen offset:{(k&3)*1024} sc0 sc1")
            for tl in range(10):
                for m in range(4):
                    a.e(f"v_accvgpr_read_b32 v{V_T+tl*4+m}, a{self.acc(tl, kq)+m}")
            a.e("s_mov_b64 exec, 1")
            for d in range(1, 4):
                g = (kq + d) & 3
                a.e(f"s_waitcnt vmcnt({10 - 5*(d-1) + (d-1)})")
                a.e(f"buffer_store_dword v2, v1, s[{S_WS}:{S_WS+3}], s{S_CTR} offen offset:{(g*4+kq)*16} sc0 sc1")
            a.e("s_mov_b64 exec, -1")
            self.stamp(3)
            for d in range(1, 4):
                src = (kq - d) & 3
                a.e(f"s_mov_b32 s{S_SPIN}, 0")
                a.label(f"K2_POLL{kq}_{d}")
                a.e(f"buffer_load_dword v3, v1, s[{S_WS}:{S_WS+3}], s{S_CTR} offen offset:{(kq*4+src)*16} sc0 sc1")
                a.e("s_waitcnt vmcnt(0)")
                a.e("v_readfirstlane_b32 s46, v3")
                a.e(f"s_add_u32 s{S_SPIN}, s{S_SPIN}, 1")
                a.e("s_cmp_eq_u32 s46, 1")
                a.e(f"s_cbranch_scc1 K2_GOT{kq}_{d}")
                a.e(f"s_cmp_lt_u32 s{S_SPIN}, 2000000")
                a.e(f"s_cbranch_scc1 K2_POLL{kq}_{d}")
                a.label(f"K2_GOT{kq}_{d}")
                tb = V_OF + (d - 1) * 20 if d < 3 else V_T + 100
                for k in range(5):
                    if k in (0, 4): a.e(f"s_add_u32 s{S_T0}, s{S_XW}, {(kq*4+src)*20480 + (4096 if k == 4 else 0)}")
                    a.e(f"buffer_load_dwordx4 {vr(tb+4*k,4)}, v{V_L16}, s[{S_WS}:{S_WS+3}], s{S_T0} offen offset:{(k&3)*1024} sc0 sc1")
            if kq < 3:
                a.e("s_branch K2_SUM")
                a.label(f"K2_X{kq+1}")
        a.label("K2_SUM")
        self.stamp(4)
        a.e("s_mov_b32 s46, 0xffff0000")
        for d in range(1, 4):
            if d == 3: a.e("s_waitcnt vmcnt(0)")
            tb = V_OF + (d - 1) * 20 if d < 3 else V_T + 100
            for r in range(20):
                a.e(f"v_lshlrev_b32 v4, 16, v{tb+r}")
                a.e(f"v_and_b32 v5, s46, v{tb+r}")
                a.e(f"v_add_f32 v{V_T+2*r}, v{V_T+2*r}, v4")
                a.e(f"v_add_f32 v{V_T+2*r+1}, v{V_T+2*r+1}, v5")
        for tl in range(10):
            a.e(f"v_cvt_pk_bf16_f32 v{V_T+tl*4}, v{V_T+tl*4}, v{V_T+tl*4+1}")
            a.e(f"v_cvt_pk_bf16_f32 v{V_T+tl*4+1}, v{V_T+tl*4+2}, v{V_T+tl*4+3}")
            a.e(f"buffer_store_dwordx2 {vr(V_T+tl*4,2)}, v{V_OUT}, s[{S_OUT}:{S_OUT+3}], s{S_OUTOFF} offen offset:{tl*32}")
        if self.opt.get("stamp2"):
            a.e("s_waitcnt vmcnt(0)")
        self.stamp(5)
        self.stamp_store()
        a.label("K2_END")
        a.e("s_endpgm")
        self.paths["k2"] = a.lines[i0:l1] + a.lines[l0:]
```

```python
from asmlib import *
import gen_k1

S_WO, S_O0, S_O1, S_WS, S_OUT, S_DBG = 8, 12, 16, 20, 24, 28
S_WAVE, S_BLK, S_KQ, S_QB, S_NT, S_T0, S_T1, S_T2 = 54, 55, 56, 57, 58, 59, 60, 61
S_DOFF, S_OOFF, S_M0A, S_M0B, S_CNT, S_XW, S_XR, S_OUTOFF, S_CTR, S_SPIN = 62, 63, 64, 65, 66, 67, 68, 69, 70, 71
V_L16 = 8
V_WD = 10
V_WA = 16
V_OUT = 24
V_OF = 64
V_T = 104
A_ACC = 0
A_F = 160
RING = 10
UNIT = 20480
XBASE = 64 << 20
FBASE = 52 << 20
POL = ['', ' nt', ' sc0', ' sc1', ' sc0 sc1', ' sc0 nt', ' sc1 nt', ' sc0 sc1 nt']

class K2:
    def __init__(self, a, opt):
        self.a = a; self.opt = opt; self.paths = {}
        self.NU = opt.get('NU', 4); self.dq = []
        self.OR = opt.get("OR", 8); self.NS = opt.get("NS", 4)
        self.launch = f"; @launch kernel=oproj_kernel grid=(256,1,1) block=(256,1,1) lds={self.NS*UNIT}"
        self.kd = gen_k1.KD.format(name="oproj_kernel", vgpr=512, sgpr=96, acc=256)

    def slot(self, n): return A_F + 4 * (n % RING)
    def oreg(self, ks, t): return V_OF + (ks % self.OR) * 8 + t * 4

    def setup(self):
        a = self.a
        a.e("s_cmp_ge_u32 s2, 256")
        a.e("s_cbranch_scc1 K2_END")
        a.e("s_load_dwordx2 s[32:33], s[0:1], 32")
        a.e("s_load_dwordx2 s[34:35], s[0:1], 72")
        a.e("s_load_dwordx4 s[36:39], s[0:1], 80")
        a.e("s_load_dwordx2 s[40:41], s[0:1], 96")
        a.e("v_and_b32 v1, 63, v0")
        a.e("v_lshrrev_b32 v2, 6, v0")
        a.e(f"v_lshlrev_b32 v{V_L16}, 4, v1")
        a.e(f"v_readfirstlane_b32 s{S_WAVE}, v2")
        if self.opt.get("xcc", 1):
            a.e("s_waitcnt lgkmcnt(0)")
            claim_issue(a, 38, S_WAVE, S_DBG, S_CNT, S_SPIN, 30, 31)
        a.e(f"s_mul_i32 s{S_T0}, s{S_WAVE}, 320")
        for i in range(5):
            a.e(f"v_add_u32 v3, s{S_T0}, v1")
            if i: a.e(f"v_add_u32 v3, {64*i}, v3")
            a.e("v_mul_u32_u24 v4, 3277, v3")
            a.e("v_lshrrev_b32 v4, 16, v4")
            a.e("v_mul_u32_u24 v5, 960, v4")
            a.e("v_lshl_add_u32 v5, v3, 4, v5")
            a.e(f"v_subrev_u32 v{V_WD+i}, {1024*i if i < 4 else 0}, v5")
        a.e("v_lshrrev_b32 v3, 5, v1")
        a.e("v_bfe_u32 v4, v1, 2, 2")
        a.e("v_lshl_add_u32 v4, v3, 3, v4")
        a.e("v_mul_u32_u24 v4, 320, v4")
        a.e("v_bfe_u32 v5, v1, 4, 1")
        a.e("v_bfe_u32 v6, v1, 1, 1")
        a.e("v_lshl_or_b32 v5, v5, 1, v6")
        a.e("v_mul_u32_u24 v5, 80, v5")
        a.e("v_add_u32 v4, v4, v5")
        a.e("v_and_b32 v5, 1, v1")
        a.e("v_lshl_add_u32 v4, v5, 3, v4")
        for s in range(self.NS):
            a.e(f"v_add_u32 v{V_WA+s}, {s*UNIT}, v4")
        a.e("v_and_b32 v5, 31, v1")
        a.e("v_mul_u32_u24 v5, 2560, v5")
        a.e(f"v_lshl_add_u32 v{V_OUT}, v3, 3, v5")
        a.e("s_waitcnt lgkmcnt(0)")
        if self.opt.get("xcc", 1):
            claim_finish(a, "K2", S_WAVE, 2, S_DBG, S_CNT, S_SPIN, 30, 31, 32, lds_off=81916)
        a.e(f"s_bfe_u32 s{S_BLK}, s2, 0x10002")
        a.e(f"s_and_b32 s{S_KQ}, s2, 3")
        a.e(f"s_lshr_b32 s{S_QB}, s2, 5")
        a.e(f"s_bfe_u32 s{S_NT}, s2, 0x20003")
        a.e(f"s_cmp_eq_u32 s{S_BLK}, 0")
        a.e(f"s_cselect_b32 s{S_WO}, s32, s34")
        a.e(f"s_cselect_b32 s{S_WO+1}, s33, s35")
        a.e(f"s_mul_i32 s{S_T0}, s{S_KQ}, {1536*1280}")
        a.e(f"s_add_u32 s{S_WO}, s{S_WO}, s{S_T0}")
        a.e(f"s_addc_u32 s{S_WO+1}, s{S_WO+1}, 0")
        a.e(f"s_mov_b32 s{S_WO+2}, {1536*1280}")
        a.e(f"s_mov_b32 s{S_WO+3}, 0x00020000")
        a.e(f"s_mul_i32 s{S_T0}, s{S_BLK}, 25165824")
        a.e(f"s_lshl_b32 s{S_T1}, s{S_QB}, 3")
        a.e(f"s_lshl_b32 s{S_T2}, s{S_WAVE}, 1")
        a.e(f"s_add_u32 s{S_T1}, s{S_T1}, s{S_T2}")
        a.e(f"s_mul_i32 s{S_T1}, s{S_T1}, 393216")
        a.e(f"s_add_u32 s{S_T0}, s{S_T0}, s{S_T1}")
        a.e(f"s_mul_i32 s{S_T1}, s{S_KQ}, 98304")
        a.e(f"s_add_u32 s{S_T0}, s{S_T0}, s{S_T1}")
        a.e(f"s_add_u32 s{S_O0}, s40, s{S_T0}")
        a.e(f"s_addc_u32 s{S_O0+1}, s41, 0")
        a.e(f"s_mov_b32 s{S_O0+2}, 98304")
        a.e(f"s_mov_b32 s{S_O0+3}, 0x00020000")
        a.e(f"s_add_u32 s{S_O1}, s{S_O0}, 393216")
        a.e(f"s_addc_u32 s{S_O1+1}, s{S_O0+1}, 0")
        a.e(f"s_mov_b32 s{S_O1+2}, 98304")
        a.e(f"s_mov_b32 s{S_O1+3}, 0x00020000")
        a.e(f"s_mov_b32 s{S_WS}, s40"); a.e(f"s_mov_b32 s{S_WS+1}, s41")
        a.e(f"s_mov_b32 s{S_WS+2}, 439353344"); a.e(f"s_mov_b32 s{S_WS+3}, 0x00020000")
        a.e(f"s_mov_b32 s{S_OUT}, s36"); a.e(f"s_mov_b32 s{S_OUT+1}, s37")
        a.e(f"s_mov_b32 s{S_OUT+2}, {8*256*1280*2}"); a.e(f"s_mov_b32 s{S_OUT+3}, 0x00020000")
        a.e(f"s_mov_b32 s{S_DBG}, s38"); a.e(f"s_mov_b32 s{S_DBG+1}, s39")
        a.e(f"s_mov_b32 s{S_DBG+2}, 256"); a.e(f"s_mov_b32 s{S_DBG+3}, 0x00020000")
        a.e(f"s_mul_i32 s{S_DOFF}, s{S_NT}, 320")
        a.e(f"s_mov_b32 s{S_OOFF}, 0")
        a.e(f"s_mul_i32 s{S_M0A}, s{S_WAVE}, 5120")
        if self.opt.get("rot"):
            a.e(f"s_mul_i32 s{S_T0}, s{S_NT}, {self.opt.get('rn', 2)}")
            a.e(f"s_mul_i32 s{S_T1}, s{S_QB}, {self.opt.get('rq', 1)}")
            a.e(f"s_add_u32 s{S_T0}, s{S_T0}, s{S_T1}")
            a.e(f"s_lshl_b32 s{S_OOFF}, s{S_T0}, 12")
            a.e(f"s_mul_i32 s{S_T0}, s{S_T0}, 81920")
            a.e(f"s_add_u32 s{S_M0B}, s{S_DOFF}, s{S_T0}")
        a.e(f"s_lshl_b32 s{S_T0}, s{S_BLK}, 5")
        a.e(f"s_lshr_b32 s{S_T1}, s2, 3")
        a.e(f"s_add_u32 s{S_T0}, s{S_T0}, s{S_T1}")
        a.e(f"s_lshl_b32 s{S_CTR}, s{S_T0}, 8")
        a.e(f"s_lshl_b32 s{S_T1}, s{S_WAVE}, 2")
        a.e(f"s_add_u32 s{S_CTR}, s{S_CTR}, s{S_T1}")
        a.e(f"s_add_u32 s{S_CTR}, s{S_CTR}, {FBASE}")
        a.e(f"s_mul_i32 s{S_T0}, s{S_T0}, {16*20480}")
        a.e(f"s_mul_i32 s{S_T1}, s{S_WAVE}, 5120")
        a.e(f"s_add_u32 s{S_T0}, s{S_T0}, s{S_T1}")
        a.e(f"s_add_u32 s{S_XW}, s{S_T0}, {XBASE}")
        a.e(f"s_lshl_b32 s{S_T0}, s{S_QB}, 2")
        a.e(f"s_add_u32 s{S_T0}, s{S_T0}, s{S_WAVE}")
        a.e(f"s_mul_i32 s{S_OUTOFF}, s{S_T0}, {64*2560}")
        a.e(f"s_mul_i32 s{S_T0}, s{S_BLK}, 1280")
        a.e(f"s_add_u32 s{S_OUTOFF}, s{S_OUTOFF}, s{S_T0}")
        a.e(f"s_add_u32 s{S_OUTOFF}, s{S_OUTOFF}, s{S_DOFF}")
        a.e(f"s_mul_i32 s{S_T0}, s{S_KQ}, 80")
        a.e(f"s_add_u32 s{S_OUTOFF}, s{S_OUTOFF}, s{S_T0}")
        if self.opt.get("rot"):
            a.e(f"s_mov_b32 s{S_DOFF}, s{S_M0B}")

    def stamp(self, i):
        if not self.opt.get("stamp2"): return
        a = self.a
        a.e("s_memrealtime s[76:77]" if self.opt.get("stamp2") == 1 else "s_memtime s[76:77]")
        a.e("s_waitcnt lgkmcnt(0)"); a.lg = []
        a.e(f"s_mov_b32 s{80+i}, s76")

    def stamp_store(self):
        if not self.opt.get("stamp2"): return
        a = self.a
        a.e(f"s_lshl_b32 s{S_T0}, s2, 8")
        a.e(f"s_lshl_b32 s{S_T1}, s{S_WAVE}, 6")
        a.e(f"s_add_u32 s{S_T0}, s{S_T0}, s{S_T1}")
        a.e(f"s_add_u32 s{S_T0}, s{S_T0}, {60<<20}")
        a.e("v_mov_b32 v1, 0")
        for i in range(16):
            a.e(f"v_mov_b32 v2, s{80+i}")
            a.e(f"buffer_store_dword v2, v1, s[{S_WS}:{S_WS+3}], s{S_T0} offen offset:{4*i}")
            a.e("s_waitcnt vmcnt(0)")

    def dma_items(self, u):
        sl = (u % self.NS) * UNIT
        nt = POL[self.opt.get('ntw', 0)]
        o = [f"s_add_u32 m0, s{S_M0A}, {sl}", "s_nop 0"]
        for i in range(4):
            o.append(("VM", f"buffer_load_dwordx4 v{V_WD+i}, s[{S_WO}:{S_WO+3}], s{S_DOFF} offen offset:{1024*i}{nt} lds", ("W", u % self.NS)))
        o += [f"s_add_u32 m0, s{S_M0A}, {sl + 4096}", "s_nop 0"]
        o.append(("VM", f"buffer_load_dwordx4 v{V_WD+4}, s[{S_WO}:{S_WO+3}], s{S_DOFF} offen{nt} lds", ("W", u % self.NS)))
        o.append(f"s_add_u32 s{S_DOFF}, s{S_DOFF}, {64*1280}")
        return o

    def emit(self, it):
        if isinstance(it, tuple): self.a.vmem(it[1], it[2])
        else: self.a.e(it)

    def dma(self, u):
        for it in self.dma_items(u): self.emit(it)

    def oadv(self):
        a = self.a
        a.e(f"s_add_u32 s{S_OOFF}, s{S_OOFF}, 4096")
        if self.opt.get("rot"):
            a.e(f"s_cmp_ge_u32 s{S_OOFF}, 98304")
            a.e(f"s_cselect_b32 s{S_OOFF}, 0, s{S_OOFF}")

    def oload(self, ks, t):
        srd = S_O0 if t == 0 else S_O1
        self.a.vmem(f"buffer_load_dwordx4 {vr(self.oreg(ks,t),4)}, v{V_L16}, s[{srd}:{srd+3}], s{S_OOFF} offen offset:{(ks&3)*1024}{POL[self.opt.get('nto', 0)]}", ("O", ks % self.OR, t))

    def wread(self, g, i):
        u, r = divmod(g, 20); s, n5 = divmod(r, 5)
        self.a.ds(f"ds_read_b64_tr_b16 {ar(self.slot(g)+2*i,2)}, v{V_WA+(u%self.NS)} offset:{s*5120 + i*1280 + n5*16}", ("wf", g % (20*self.NU)))

    def body(self, first=False):
        a = self.a
        D = self.opt.get("D2", 5)
        G = self.opt.get("G2", 2)
        NT = 20 * self.NU
        for g in range(NT):
            u, r = divmod(g, 20); s, n5 = divmod(r, 5)
            ks = 4 * u + s
            if n5 == 0:
                a.wait_vm([("O", ks % self.OR, 0), ("O", ks % self.OR, 1)])
            a.wait_lg(("wf", (g + (G - 1 - g % G)) % NT))
            for t in range(2):
                acc = ar(A_ACC + (t * 5 + n5) * 16, 16)
                cin = "0" if (first and ks == 0) else acc
                a.e(f"v_mfma_f32_32x32x16_bf16 {acc}, {ar(self.slot(g),4)}, {vr(self.oreg(ks,t),4)}, {cin}")
                self.wread(g + D, t)
                if t == 0 and n5 in (1, 3):
                    kn = ks - 1 + self.OR
                    if n5 == 1 and (kn & 3) == 0: self.oadv()
                    self.oload(kn, n5 >> 1)
                elif t == 0 and n5 in (0, 2, 4):
                    while self.dq:
                        it = self.dq.pop(0); self.emit(it)
                        if isinstance(it, tuple): break
            if r == 20 - D - 1:
                assert not [x for x in self.dq if isinstance(x, tuple)]
                for it in self.dq: self.emit(it)
                a.wait_vm([("W", (u + 1) % self.NS)])
                a.e("s_barrier")
                self.dq = self.dma_items(u + self.NS - 1)

    def build(self, name):
        a = self.a
        D = self.opt.get("D2", 5)
        a.raw(f".globl {name}\n.p2align 8\n.type {name},@function")
        a.label(name)
        self.setup()
        i0 = len(a.lines)
        self.stamp(0)
        for u in range(self.NS - 1):
            self.dma(u)
            if 4 * u < self.OR - 1:
                if u: self.oadv()
                for ks in range(4 * u, min(4 * u + 4, self.OR - 1)):
                    for t in range(2): self.oload(ks, t)
        a.wait_vm([("W", 0)])
        a.e("s_barrier")
        self.stamp(1)
        for g in range(D):
            self.wread(g, 0); self.wread(g, 1)
        self.body(first=True)
        a.e(f"s_mov_b32 s{S_CNT}, {24 // self.NU - 1}")
        a.raw(".p2align 3")
        a.label("K2_LOOP")
        l0 = len(a.lines)
        self.body()
        t1 = a.lines[l0:]
        import copy
        b = Asm(); b.lg = list(a.lg); b.vm = list(a.vm)
        sa = self.a; self.a = b; dq = list(self.dq); self.body(); self.a = sa; self.dq = dq
        assert b.lines == t1, "K2 loop not steady"
        a.e(f"s_sub_u32 s{S_CNT}, s{S_CNT}, 1")
        a.e(f"s_cmp_lg_u32 s{S_CNT}, 0")
        a.e("s_cbranch_scc1 K2_LOOP")
        l1 = len(a.lines)
        if self.opt.get("k2nocomp"):
            a.lines[i0:] = [l for l in a.lines[i0:] if not (l.strip().startswith("v_mfma") or l.strip().startswith("ds_read"))]
        if self.opt.get("k2noo"):
            a.lines[i0:] = [l for l in a.lines[i0:] if not (l.strip().startswith("buffer_load") and " lds" not in l)]
        if self.opt.get("k2now"):
            a.lines[i0:] = [l for l in a.lines[i0:] if not (l.strip().startswith("buffer_load") and " lds" in l)]
        l1 = len(a.lines); l0 = a.lines.index("K2_LOOP:") + 1
        a.e("s_waitcnt vmcnt(0) lgkmcnt(0)"); a.vm = []; a.lg = []
        a.e("s_nop 15")
        self.stamp(2)
        a.e("v_mov_b32 v1, 0")
        a.e("v_mov_b32 v2, 1")
        for kq in range(4):
            if kq < 3:
                a.e(f"s_cmp_lg_u32 s{S_KQ}, {kq}")
                a.e(f"s_cbranch_scc1 K2_X{kq+1}")
            for d in range(1, 4):
                g = (kq + d) & 3
                tb = V_T + 40 + (d - 1) * 20
                for tl in range(10):
                    for m in range(4):
                        a.e(f"v_accvgpr_read_b32 v{4+m}, a{A_ACC+tl*16+4*g+m}")
                    a.e(f"v_cvt_pk_bf16_f32 v{tb+2*tl}, v4, v5")
                    a.e(f"v_cvt_pk_bf16_f32 v{tb+2*tl+1}, v6, v7")
                    if tl % 2 == 1:
                        k = tl // 2
                        if k in (0, 4): a.e(f"s_add_u32 s{S_T0}, s{S_XW}, {(g*4+kq)*20480 + (4096 if k == 4 else 0)}")
                        a.e(f"buffer_store_dwordx4 {vr(tb+4*k,4)}, v{V_L16}, s[{S_WS}:{S_WS+3}], s{S_T0} offen offset:{(k&3)*1024} sc0 sc1")
            for tl in range(10):
                for m in range(4):
                    a.e(f"v_accvgpr_read_b32 v{V_T+tl*4+m}, a{A_ACC+tl*16+4*kq+m}")
            a.e("s_mov_b64 exec, 1")
            for d in range(1, 4):
                g = (kq + d) & 3
                a.e(f"s_waitcnt vmcnt({10 - 5*(d-1) + (d-1)})")
                a.e(f"buffer_store_dword v2, v1, s[{S_WS}:{S_WS+3}], s{S_CTR} offen offset:{(g*4+kq)*16} sc0 sc1")
            a.e("s_mov_b64 exec, -1")
            self.stamp(3)
            for d in range(1, 4):
                src = (kq - d) & 3
                a.e(f"s_mov_b32 s{S_SPIN}, 0")
                a.label(f"K2_POLL{kq}_{d}")
                a.e(f"buffer_load_dword v3, v1, s[{S_WS}:{S_WS+3}], s{S_CTR} offen offset:{(kq*4+src)*16} sc0 sc1")
                a.e("s_waitcnt vmcnt(0)")
                a.e("v_readfirstlane_b32 s46, v3")
                a.e(f"s_add_u32 s{S_SPIN}, s{S_SPIN}, 1")
                a.e("s_cmp_eq_u32 s46, 1")
                a.e(f"s_cbranch_scc1 K2_GOT{kq}_{d}")
                a.e(f"s_cmp_lt_u32 s{S_SPIN}, 2000000")
                a.e(f"s_cbranch_scc1 K2_POLL{kq}_{d}")
                a.label(f"K2_GOT{kq}_{d}")
                tb = V_OF + (d - 1) * 20 if d < 3 else V_T + 100
                for k in range(5):
                    if k in (0, 4): a.e(f"s_add_u32 s{S_T0}, s{S_XW}, {(kq*4+src)*20480 + (4096 if k == 4 else 0)}")
                    a.e(f"buffer_load_dwordx4 {vr(tb+4*k,4)}, v{V_L16}, s[{S_WS}:{S_WS+3}], s{S_T0} offen offset:{(k&3)*1024} sc0 sc1")
            if kq < 3:
                a.e("s_branch K2_SUM")
                a.label(f"K2_X{kq+1}")
        a.label("K2_SUM")
        self.stamp(4)
        a.e("s_mov_b32 s46, 0xffff0000")
        for d in range(1, 4):
            if d == 3: a.e("s_waitcnt vmcnt(0)")
            tb = V_OF + (d - 1) * 20 if d < 3 else V_T + 100
            for r in range(20):
                a.e(f"v_lshlrev_b32 v4, 16, v{tb+r}")
                a.e(f"v_and_b32 v5, s46, v{tb+r}")
                a.e(f"v_add_f32 v{V_T+2*r}, v{V_T+2*r}, v4")
                a.e(f"v_add_f32 v{V_T+2*r+1}, v{V_T+2*r+1}, v5")
        for tl in range(10):
            t, n5 = divmod(tl, 5)
            a.e(f"v_cvt_pk_bf16_f32 v{V_T+tl*4}, v{V_T+tl*4}, v{V_T+tl*4+1}")
            a.e(f"v_cvt_pk_bf16_f32 v{V_T+tl*4+1}, v{V_T+tl*4+2}, v{V_T+tl*4+3}")
            if n5 == 0:
                a.e(f"s_add_u32 s{S_T0}, s{S_OUTOFF}, {t*32*2560}")
            a.e(f"buffer_store_dwordx2 {vr(V_T+tl*4,2)}, v{V_OUT}, s[{S_OUT}:{S_OUT+3}], s{S_T0} offen offset:{n5*16}")
        if self.opt.get("stamp2"):
            a.e("s_waitcnt vmcnt(0)")
        self.stamp(5)
        self.stamp_store()
        a.label("K2_END")
        a.e("s_endpgm")
        self.paths["k2"] = a.lines[i0:l1] + a.lines[l0:]
```

```python
from asmlib import *
import math, struct

def f32bits(x):
    return struct.unpack("<I", struct.pack("<f", x))[0]

S_X, S_WQ, S_K, S_V, S_WS, S_NUL = 8, 12, 16, 20, 24, 4
S_WAVE, S_W3072, S_ROUND, S_B, S_H, S_C = 54, 55, 56, 57, 58, 59
S_KOFF, S_VOFF, S_PA, S_PB, S_PC, S_CNT, S_FLAG, S_SITE = 60, 61, 62, 63, 64, 65, 66, 67
S_T0, S_T1, S_XOFF, S_WQOFF, S_WSOFF, S_T2, S_T3 = 68, 69, 70, 71, 72, 73, 74
S_XM0, S_ITOFF, S_DK, S_DV = 75, 78, 79, 3
S_TW, S_TO1, S_TO2 = 48, 52, 53
S_IFL = 52
V_TMP = 1
V_XD = 9
V_KA, V_VA = 17, 21
V_KD = 25
V_L16 = 28
V_AL, V_THR = 29, 33
V_L, V_M, V_NEGM, V_MX = 80, 84, 88, 92
V_WD = 41
V_FL = 44
V_TO1, V_TO2 = 45, 46
V_P = 48
V_CI = 64
V_XA = 64
V_WA = 68
V_S = 96
V_Q = 160
A_O = 0
A_F = 192
A_ST = 240
RING = 12
PAGE = 12288
WPAGE = [4, 6, 5, 7, 3]
CSC = (192 ** -0.5) * math.log2(math.e)
THR_T = 8.0
LMAX = 65536.0

class K1:
    def __init__(self, a, opt):
        self.a = a
        self.opt = opt
        self.fc = 0
        self.rare = []
        self.paths = {}
        self.mg = opt.get('merged', 0)
        self.k2 = None

    def setup(self):
        a = self.a
        T = 100
        a.e("s_cmp_ge_u32 s2, 256")
        a.e("s_cbranch_scc1 K2_END" if self.mg else "s_cbranch_scc1 K1_END")
        a.e(f"s_load_dwordx16 s[28:43], s[0:1], 0")
        a.e(f"s_load_dwordx8 s[44:51], s[0:1], 64")
        a.e(f"s_load_dwordx2 s[52:53], s[0:1], 96")
        a.e("v_and_b32 v101, 63, v0")
        a.e("v_lshrrev_b32 v102, 6, v0")
        a.e("s_nop 1")
        a.e(f"v_readfirstlane_b32 s{S_WAVE}, v102")
        if self.opt.get("xcc", 1):
            a.e("s_waitcnt lgkmcnt(0)")
            claim_issue(a, 50, S_WAVE, S_X, S_KOFF, S_VOFF, 1, 2)
        a.e("v_lshrrev_b32 v104, 4, v101")
        a.e("v_and_b32 v103, 15, v101")
        a.e("v_and_b32 v105, 6, v101")
        a.e(f"s_mul_i32 s{S_W3072}, s{S_WAVE}, 3072")
        a.e(f"s_mov_b32 s{S_C}, 0x{f32bits(CSC):08x}")
        a.e(f"v_lshlrev_b32 v{V_L16}, 4, v101")
        a.e(f"v_lshlrev_b32 v{V_TO1}, 7, v101")
        a.e("v_min_u32 v107, 47, v101")
        a.e("v_mul_u32_u24 v108, 2731, v107"); a.e("v_lshrrev_b32 v108, 16, v108"); a.e("v_mul_u32_u24 v108, 9216, v108")
        a.e(f"v_lshl_add_u32 v{V_TO2}, v107, 7, v108")
        a.e(f"v_lshlrev_b32 v{V_FL}, 2, v102")
        a.e(f"v_add_u32 v{V_FL}, {PAGE}, v{V_FL}")
        a.e(f"s_lshl_b32 s{S_T0}, s{S_WAVE}, 13")
        a.e(f"s_add_u32 s{S_XM0}, s{S_T0}, 98304")
        a.e("v_mul_u32_u24 v107, 384, v103")
        a.e("v_lshlrev_b32 v109, 7, v103")
        a.e(f"v_add_u32 v109, s{S_XM0}, v109")
        for b in range(2):
            a.e(f"v_add_u32 v108, {4*b}, v104")
            a.e("v_xor_b32 v108, v108, v105")
            a.e(f"v_lshl_add_u32 v{V_KA+b}, v108, 4, v107")
            a.e(f"v_lshl_add_u32 v{V_XA+b}, v108, 4, v109")
        a.e("v_bfe_u32 v109, v101, 2, 2")
        a.e("v_bfe_u32 v110, v101, 1, 1")
        a.e("v_and_b32 v111, 1, v101")
        a.e("v_lshlrev_b32 v111, 3, v111")
        a.e("v_and_b32 v112, 1, v104")
        a.e("v_lshlrev_b32 v112, 2, v112")
        a.e("v_and_b32 v113, 2, v109")
        a.e("v_or_b32 v112, v112, v113")
        a.e("v_lshl_add_u32 v113, v104, 2, v109")
        a.e("v_mul_u32_u24 v113, 384, v113")
        a.e("v_add_u32 v113, v113, v111")
        a.e("v_lshl_add_u32 v114, v104, 3, v109")
        a.e("v_mul_u32_u24 v114, 384, v114")
        a.e("v_add_u32 v114, v114, v111")
        a.e(f"v_add_u32 v114, {3*PAGE}, v114")
        for b in range(4):
            a.e(f"v_add_u32 v115, {2*b}, v110")
            a.e("v_xor_b32 v115, v115, v112")
            a.e(f"v_lshl_add_u32 v{V_VA+b}, v115, 4, v113")
            a.e(f"v_lshl_add_u32 v{V_WA+b}, v115, 4, v114")
        a.e(f"s_mul_i32 s{S_T0}, s{S_WAVE}, 192")
        for i in range(3):
            a.e(f"v_add_u32 v107, s{S_T0}, v101")
            if i: a.e(f"v_add_u32 v107, {64*i}, v107")
            a.e("v_mul_u32_u24 v108, 2731, v107")
            a.e("v_lshrrev_b32 v108, 16, v108")
            a.e("v_and_b32 v113, 6, v108")
            a.e("v_lshlrev_b32 v113, 4, v113")
            a.e("v_lshlrev_b32 v114, 4, v107")
            a.e("v_xor_b32 v113, v114, v113")
            a.e(f"v_subrev_u32 v{V_KD+i}, {1024*i}, v113")
            a.e("v_bfe_u32 v113, v108, 3, 1")
            a.e("v_lshlrev_b32 v113, 2, v113")
            a.e("v_and_b32 v115, 2, v108")
            a.e("v_or_b32 v113, v113, v115")
            a.e("v_lshlrev_b32 v113, 4, v113")
            a.e("v_xor_b32 v113, v114, v113")
            a.e("v_mul_u32_u24 v115, 11904, v108")
            a.e("v_add_u32 v113, v115, v113")
            a.e(f"v_subrev_u32 v{V_WD+i}, {1024*i}, v113")
        a.e(f"s_mul_i32 s{S_T0}, s{S_WAVE}, {64*1280}")
        for i in range(8):
            a.e("v_lshrrev_b32 v107, 3, v101")
            a.e("v_and_b32 v113, 6, v107")
            a.e(f"v_add_u32 v107, {8*i}, v107")
            a.e("v_and_b32 v114, 7, v101")
            a.e("v_xor_b32 v113, v113, v114")
            a.e("v_mul_u32_u24 v107, 1280, v107")
            a.e("v_lshl_add_u32 v107, v113, 4, v107")
            a.e(f"v_add_u32 v107, s{S_T0}, v107")
            a.e(f"v_subrev_u32 v{V_XD+i}, {1024*(i&3)}, v107")
        for i in range(8):
            a.e(f"v_accvgpr_write_b32 a{A_ST+i}, v{V_XA+i}")
        a.e("s_waitcnt lgkmcnt(0)")
        if self.opt.get("xcc", 1):
            claim_finish(a, "K1", S_WAVE, 2, S_X, S_KOFF, S_VOFF, 1, 2, 3, lds_off=PAGE)
        a.e(f"s_mov_b32 s{S_WS}, s52")
        a.e(f"s_mov_b32 s{S_WS+1}, s53")
        a.e(f"s_mov_b32 s{S_WS+2}, {439353344}")
        a.e(f"s_mov_b32 s{S_WS+3}, 0x00020000")
        a.e(f"s_mov_b32 s{S_NUL}, s52")
        a.e(f"s_mov_b32 s{S_NUL+1}, s53")
        a.e(f"s_mov_b32 s{S_NUL+2}, 0")
        a.e(f"s_mov_b32 s{S_NUL+3}, 0x00020000")
        a.e("v_min_u32 v107, 15, v101")
        a.e("v_lshlrev_b32 v107, 2, v107")
        a.e("v_mov_b32 v108, 0")
        a.e(f"s_lshl_b32 s{S_T0}, s2, 6")
        a.e(f"s_add_u32 s{S_T0}, s{S_T0}, {52<<20}")
        a.e(f"buffer_store_dword v108, v107, s[{S_WS}:{S_WS+3}], s{S_T0} offen{' sc0 sc1' if self.mg else ''}")
        a.e(f"s_and_b32 s{S_T0}, s2, 1")
        a.e(f"s_lshl_b32 s{S_T0}, s{S_T0}, 2")
        a.e(f"s_bfe_u32 s{S_T1}, s2, 0x20003")
        a.e(f"s_or_b32 s{S_B}, s{S_T0}, s{S_T1}")
        a.e(f"s_bfe_u32 s{S_T0}, s2, 0x20001")
        a.e(f"s_lshl_b32 s{S_T0}, s{S_T0}, 3")
        a.e(f"s_lshr_b32 s{S_T1}, s2, 5")
        a.e(f"s_or_b32 s{S_H}, s{S_T0}, s{S_T1}")
        a.e(f"s_mov_b32 s{S_ROUND}, 0")
        a.e(f"s_lshl_b32 s{S_T0}, s{S_B}, 5")
        a.e(f"s_add_u32 s{S_T0}, s{S_T0}, s{S_H}")
        a.e(f"s_mul_i32 s{S_ITOFF}, s{S_T0}, 393216")
        if self.mg:
            a.e(f"s_lshl_b32 s{S_IFL}, s{S_T0}, 6")
            a.e(f"s_add_u32 s{S_IFL}, s{S_IFL}, {53<<20}")
            a.e("v_mov_b32 v107, 0")
            a.e(f"buffer_store_dword v108, v107, s[{S_WS}:{S_WS+3}], s{S_IFL} offen sc0 sc1")
            a.e(f"s_add_u32 s{S_T1}, s{S_IFL}, 16384")
            a.e(f"buffer_store_dword v108, v107, s[{S_WS}:{S_WS+3}], s{S_T1} offen sc0 sc1")
            a.e(f"s_mov_b32 s{S_TW}, s50"); a.e(f"s_mov_b32 s{S_TW+1}, s51"); a.e(f"s_mov_b32 s{S_TW+2}, 256"); a.e(f"s_mov_b32 s{S_TW+3}, 0x00020000")
        a.e(f"s_mul_i32 s{S_XOFF}, s{S_B}, 327680")
        a.e(f"s_mul_i32 s{S_WQOFF}, s{S_H}, 384")
        for s in (S_X, S_WQ, S_K, S_V):
            a.e(f"s_mov_b32 s{s+3}, 0x00020000")

    def srd_xw(self, mode):
        o = [f"s_cmp_eq_u32 s{S_ROUND}, 0"]
        if mode == "cur":
            o += [f"s_cselect_b32 s{S_X}, s28, s38", f"s_cselect_b32 s{S_X+1}, s29, s39", f"s_mov_b32 s{S_X+2}, {8*256*640*2}",
                  f"s_cselect_b32 s{S_WQ}, s34, s44", f"s_cselect_b32 s{S_WQ+1}, s35, s45", f"s_mov_b32 s{S_WQ+2}, {640*6144*2}"]
        else:
            o += [f"s_mov_b32 s{S_X}, s38", f"s_mov_b32 s{S_X+1}, s39", f"s_cselect_b32 s{S_X+2}, {8*256*640*2}, 0",
                  f"s_mov_b32 s{S_WQ}, s44", f"s_mov_b32 s{S_WQ+1}, s45", f"s_cselect_b32 s{S_WQ+2}, {640*6144*2}, 0"]
        return o
    def srd_kv(self, which, mode):
        s, pa, pb = (S_K, 30, 40) if which == "K" else (S_V, 32, 42)
        o = [f"s_cmp_eq_u32 s{S_ROUND}, 0"]
        if mode == "cur":
            o += [f"s_cselect_b32 s{s}, s{pa}, s{pb}", f"s_cselect_b32 s{s+1}, s{pa+1}, s{pb+1}", f"s_mov_b32 s{s+2}, 393216"]
            o += [f"s_add_u32 s{s}, s{s}, s{S_ITOFF}", f"s_addc_u32 s{s+1}, s{s+1}, 0"]
        else:
            o += [f"s_cselect_b32 s{s+2}, 393216, 0", f"s_add_u32 s{s}, s{pb}, s{S_ITOFF}", f"s_addc_u32 s{s+1}, s{pb+1}, 0"]
        return o

    def item_setup(self):
        a = self.a
        for l in self.srd_kv("V", "cur"): a.e(l)
        a.e(f"s_mul_i32 s{S_WSOFF}, s{S_ROUND}, 25165824")
        a.e(f"s_lshl_b32 s{S_T0}, s{S_B}, 4")
        a.e(f"s_lshl_b32 s{S_T1}, s{S_WAVE}, 2")
        a.e(f"s_add_u32 s{S_T0}, s{S_T0}, s{S_T1}")
        a.e(f"s_mul_i32 s{S_T0}, s{S_T0}, 196608")
        a.e(f"s_add_u32 s{S_WSOFF}, s{S_WSOFF}, s{S_T0}")
        a.e(f"s_mul_i32 s{S_T0}, s{S_H}, 6144")
        a.e(f"s_add_u32 s{S_WSOFF}, s{S_WSOFF}, s{S_T0}")
        self.ring_init()
        for i in range(8):
            a.e(f"v_accvgpr_read_b32 v{V_XA+i}, a{A_ST+i}")

    def ring_init(self):
        a = self.a
        a.e(f"s_add_u32 s{S_PA}, s{S_W3072}, 98304")
        a.e(f"s_mov_b32 s{S_PB}, s{S_W3072}")
        a.e(f"s_add_u32 s{S_PC}, s{S_W3072}, 49152")
        a.e(f"s_mov_b32 s{S_FLAG}, 0")
        a.e(f"s_mov_b32 s{S_KOFF}, {5*PAGE}")
        a.e(f"s_mov_b32 s{S_VOFF}, {3*PAGE}")

    def addr_reset(self):
        a = self.a
        for i in range(2):
            a.e(f"v_subrev_u32 v{V_KA+i}, 49152, v{V_KA+i}")

    def nt(self):
        return " nt" if self.opt.get("nt", 1) else ""
    def VM(self, s, tag):
        return (self.opt.get("DMAC", 8), ("VM", s, tag))

    def g_kv_static(self, which, tile, tag=None):
        srd = S_K if which == "K" else S_V
        page = 2 * (tile % 6) + (0 if which == "K" else 1)
        o = [(4, f"s_add_u32 m0, s{S_W3072}, {page*PAGE}"), (4, f"s_mov_b32 s{S_T2}, {tile*PAGE}")]
        for i in range(3):
            o.append(self.VM(f"buffer_load_dwordx4 v{V_KD+i}, s[{srd}:{srd+3}], s{S_T2} offen offset:{1024*i}{self.nt()} lds", tag or (which, tile)))
        return o
    def g_wq(self, u):
        o = [(4, f"s_add_u32 m0, s{S_W3072}, {WPAGE[u % 5]*PAGE}"), (4, f"s_add_u32 s{S_T2}, s{S_WQOFF}, {u*32*12288}")]
        for i in range(3):
            o.append(self.VM(f"buffer_load_dwordx4 v{V_WD+i}, s[{S_WQ}:{S_WQ+3}], s{S_T2} offen offset:{1024*i} lds", ("W", u)))
        return o
    def g_x(self, c, hlf):
        o = [(4, f"s_add_u32 m0, s{S_XM0}, {(c&1)*32768 + hlf*4096}"), (4, f"s_add_u32 s{S_T3}, s{S_XOFF}, {c*128}")]
        for i in range(4):
            o.append(self.VM(f"buffer_load_dwordx4 v{V_XD+4*hlf+i}, s[{S_X}:{S_X+3}], s{S_T3} offen offset:{1024*i} lds", ("X", c)))
        return o
    def emit(self, it):
        a = self.a
        if isinstance(it, tuple):
            if it[0] == "VM": a.vmem(it[1], it[2])
            elif it[0] == "DS": a.ds(it[1], it[2])
            elif it[0] == "WVM": a.wait_vm(it[1])
            elif it[0] == "WLG": a.wait_lg(it[1])
            elif it[0] == "FN": it[1]()
        else:
            a.e(it)
    def emit_all(self, items):
        for c, it in items: self.emit(it)

    def xreg(self, c, qt, s):
        return V_S + (c & 1) * 32 + s * 16 + qt * 4
    def x_read(self, c, n):
        s, qt = n >> 2, n & 3
        self.a.ds(f"ds_read_b128 {vr(self.xreg(c,qt,s),4)}, v{V_XA+s} offset:{(c&1)*32768 + qt*2048}", ("xr", c))
    def oacc(self, dt, qt):
        return A_O + (dt * 4 + qt) * 4
    def slot(self, n):
        return A_F + 4 * (n % RING)

    def g_touch_x(self):
        T = V_TMP
        S4 = lambda ls: [(4, l) for l in ls]
        o = S4([f"s_lshr_b32 s{S_T0}, s2, 3", f"s_lshl_b32 s{S_T0}, s{S_T0}, 2", f"s_add_u32 s{S_T0}, s{S_T0}, s{S_WAVE}",
                f"s_and_b32 s{S_T1}, s2, 1", f"s_mul_i32 s{S_T1}, s{S_T1}, 1310720",
                f"s_mul_i32 s{S_T0}, s{S_T0}, 10240", f"s_add_u32 s{S_T1}, s{S_T1}, s{S_T0}"])
        o.append(self.VM(f"buffer_load_dword v47, v{V_TO1}, s[{S_X}:{S_X+3}], s{S_T1} offen", "T"))
        o += S4([f"v_min_u32 v{T+3}, {15*128}, v{V_TO1}", f"s_add_u32 s{S_T1}, s{S_T1}, 8192"])
        o.append(self.VM(f"buffer_load_dword v47, v{T+3}, s[{S_X}:{S_X+3}], s{S_T1} offen", "T"))
        return o

    def g_touch_w(self):
        T = V_TMP
        S4 = lambda ls: [(4, l) for l in ls]
        o = S4([f"s_lshr_b32 s{S_T0}, s2, 3", f"s_lshl_b32 s{S_T0}, s{S_T0}, 2", f"s_add_u32 s{S_T0}, s{S_T0}, s{S_WAVE}",
                f"s_bfe_u32 s{S_T1}, s2, 0x20001", f"s_mul_i32 s{S_T1}, s{S_T1}, 3072",
                f"s_mul_i32 s{S_T0}, s{S_T0}, {5*12288}", f"s_add_u32 s{S_T1}, s{S_T1}, s{S_T0}"])
        o.append(self.VM(f"buffer_load_dword v47, v{V_TO2}, s[{S_WQ}:{S_WQ+3}], s{S_T1} offen", "T"))
        o += S4([f"s_add_u32 s{S_T1}, s{S_T1}, 24576"])
        o.append(self.VM(f"buffer_load_dword v47, v{V_TO2}, s[{S_WQ}:{S_WQ+3}], s{S_T1} offen", "T"))
        o += S4([f"v_min_u32 v{T+3}, {23*128}, v{V_TO1}", f"s_add_u32 s{S_T1}, s{S_T1}, 24576"])
        o.append(self.VM(f"buffer_load_dword v47, v{T+3}, s[{S_WQ}:{S_WQ+3}], s{S_T1} offen", "T"))
        return o

    def g_touch_o(self, cold=False):
        T = V_TMP
        S4 = lambda ls: [(4, l) for l in ls]
        if cold:
            o = S4([f"s_mov_b32 s{S_NUL+2}, 0", f"s_mov_b32 s{S_T1}, 0"])
        else:
            o = S4([f"s_cmp_lt_u32 s2, 128", f"s_cselect_b32 s{S_NUL}, s36, s46", f"s_cselect_b32 s{S_NUL+1}, s37, s47",
                    f"s_cmp_eq_u32 s{S_ROUND}, 0", f"s_cselect_b32 s{S_NUL+2}, 0, {6144*640*2}",
                    f"s_and_b32 s{S_T0}, s2, 127", f"s_lshl_b32 s{S_T0}, s{S_T0}, 2", f"s_add_u32 s{S_T0}, s{S_T0}, s{S_WAVE}", f"s_mul_i32 s{S_T1}, s{S_T0}, 15360"])
        o.append(self.VM(f"buffer_load_dword v47, v{V_TO1}, s[{S_NUL}:{S_NUL+3}], s{S_T1} offen", "T"))
        o += S4([f"v_min_u32 v{T+3}, {55*128}, v{V_TO1}", f"s_add_u32 s{S_T1}, s{S_T1}, 8192"])
        o.append(self.VM(f"buffer_load_dword v47, v{T+3}, s[{S_NUL}:{S_NUL+3}], s{S_T1} offen", "T"))
        return o

    def g_signal(self, cold=False):
        if not self.mg: return []
        T = V_TMP
        S4 = lambda ls: [(4, l) for l in ls]
        if cold:
            return [self.VM(f"buffer_load_dword v47, v{V_L16}, s[{S_NUL}:{S_NUL+3}], 0 offen", "T")] * 2
        o = S4([f"v_mov_b32 v{T}, s{S_ROUND}", f"v_sub_u32 v{T+1}, 1, v{T}", f"v_mov_b32 v{T+2}, 0",
                f"s_cmp_eq_u32 s{S_WAVE}, 0", f"s_cselect_b32 s{S_T0}, s{S_IFL}, -16", f"s_cselect_b32 s{S_T1}, 16, 4096", "s_mov_b64 exec, 1"])
        o.append((4, ("VM", f"buffer_store_dword v{T}, v{T+2}, s[{S_WS}:{S_WS+3}], s{S_T0} offen sc0 sc1", "T", "now")))
        o.append((4, ("VM", f"buffer_atomic_add v{T+1}, v{T+2}, s[{S_TW}:{S_TW+3}], s{S_T1} offen sc1", "T", "now")))
        o += S4(["s_mov_b64 exec, -1"])
        return o

    def cold_loads(self):
        a = self.a
        for l in self.srd_xw("cur") + self.srd_kv("K", "cur"): a.e(l)
        for u in range(3): self.emit_all(self.g_wq(u))
        self.emit_all(self.g_touch_x())
        self.emit_all(self.g_wq(3))
        self.emit_all(self.g_touch_w())
        self.emit_all(self.g_touch_o(cold=True))
        self.emit_all(self.g_signal(cold=True))
        for c in range(2):
            for h in range(2): self.emit_all(self.g_x(c, h))
        self.emit_all(self.g_kv_static("K", 0))
        for i in range(24):
            a.vmem(f"buffer_load_dword v47, v{V_L16}, s[{S_NUL}:{S_NUL+3}], 0 offen", "ST")

    def phase_q(self):
        a = self.a
        D = self.opt.get("DQ", 5)
        a.c("---- phase Q")
        q0 = len(a.lines)
        a.wait_vm([("X", 0), ("W", 0)])
        a.e("s_barrier")
        for n in range(8): self.x_read(0, n)
        base = self.fc
        def wread(g, i):
            u, dt = divmod(g, 12)
            off = (WPAGE[u % 5] - 3) * PAGE + i * 1536 + (dt >> 2) * 128
            a.ds(f"ds_read_b64_tr_b16 {ar(self.slot(base+g)+2*i,2)}, v{V_WA+(dt&3)} offset:{off}", ("wf", g))
        for g in range(D):
            wread(g, 0); wread(g, 1)
        queue = self.g_kv_static("K", 1) + self.g_kv_static("V", 0)
        NG = 240
        last_vm = -9
        for g in range(NG):
            u, r = divmod(g, 12); dt = r
            c = u >> 1
            if r == 0 and (u & 1) == 0:
                a.wait_lg(("xr", c))
                if c + 2 < 10: queue += self.g_x(c + 2, 0) + self.g_x(c + 2, 1)
            GQ = self.opt.get("GQ", 2)
            a.wait_lg(("wf", min(g + (GQ - 1 - g % GQ), NG - 1)))
            for t in range(4):
                acc = ar(self.oacc(dt, t), 4)
                cin = "0" if u == 0 else acc
                a.e(f"v_mfma_f32_16x16x32_bf16 {acc}, {ar(self.slot(base+g),4)}, {vr(self.xreg(c,t,u&1),4)}, {cin}")
                if g + D < NG and t < 2: wread(g + D, t)
                if t < 2: continue
                m = 2 * g + (t - 2)
                while queue:
                    cst, it = queue[0]
                    if isinstance(it, tuple) and it[0] == "VM":
                        if m - last_vm < self.opt.get("QSP", 2): break
                        last_vm = m
                        self.emit(it); queue.pop(0)
                        break
                    self.emit(it); queue.pop(0)
            if r == 12 - D - 1 and u + 1 < 20:
                a.wait_vm([("W", u + 1)])
                a.e("s_barrier")
                if u + 4 < 20: queue += self.g_wq(u + 4)
                elif self.opt.get("early", 1):
                    if u == 16: queue += self.g_kv_static("K", 2)
                    if u == 17: queue += self.g_kv_static("K", 3)
                    if u == 18: queue += self.g_kv_static("V", 2) + self.g_kv_static("K", 4)
            if (u & 1) == 1 and c + 1 < 10:
                if r == 1: a.wait_vm([("X", c + 1)])
                if 1 <= r <= 8: self.x_read(c + 1, r - 1)
        self.emit_all(queue)
        self.fc = base + NG
        a.e("s_barrier")
        if self.opt.get("qnodma"):
            a.lines[q0:] = [l for l in a.lines[q0:] if not l.strip().startswith("buffer_load")]

    def q_convert(self):
        a = self.a
        a.e("s_nop 7")
        pend = None
        for qt in range(4):
            for ds in range(6):
                for e in range(2):
                    for m in range(4):
                        a.e(f"v_accvgpr_read_b32 v{V_TMP+4*e+m}, a{self.oacc(2*ds+e, qt)+m}")
                if pend is not None:
                    a.e(f"v_permlane16_swap_b32 v{pend}, v{pend+2}")
                    a.e(f"v_permlane16_swap_b32 v{pend+1}, v{pend+3}")
                if not self.opt.get("dump_q"):
                    for m in range(8):
                        a.e(f"v_mul_f32 v{V_TMP+m}, s{S_C}, v{V_TMP+m}")
                q = V_Q + qt * 24 + ds * 4
                for m in range(4):
                    a.e(f"v_cvt_pk_bf16_f32 v{q+m}, v{V_TMP+2*m}, v{V_TMP+2*m+1}")
                a.e("s_nop 0")
                a.e(f"v_permlane32_swap_b32 v{q}, v{q+2}")
                a.e(f"v_permlane32_swap_b32 v{q+1}, v{q+3}")
                pend = q
        a.e("s_nop 1")
        a.e(f"v_permlane16_swap_b32 v{pend}, v{pend+2}")
        a.e(f"v_permlane16_swap_b32 v{pend+1}, v{pend+3}")

    def S(self, p, qt, e):
        return V_S + p * 32 + (e >> 2) * 16 + qt * 4 + (e & 3)

    def maxchain(self, p, t):
        mx = f"v{V_MX+t}"
        s = lambda e: f"v{self.S(p,t,e)}"
        return [(4, f"v_max3_f32 {mx}, {s(0)}, {s(1)}, {s(2)}"), (4, f"v_max3_f32 {mx}, {mx}, {s(3)}, {s(4)}"),
                (4, f"v_max3_f32 {mx}, {mx}, {s(5)}, {s(6)}"), (4, f"v_max_f32 {mx}, {mx}, {s(7)}")]

    def xreduce(self, reg, tmp, op):
        o = []
        for sw in ("v_permlane32_swap_b32", "v_permlane16_swap_b32"):
            o += [(4, f"v_mov_b32 v{tmp}, v{reg}"), (8, "s_nop 1"), (4, f"{sw} v{reg}, v{tmp}"), (4, f"{op} v{reg}, v{reg}, v{tmp}")]
        return o

    def q_max(self, p, t, site, first, safe):
        o = self.maxchain(p, t)
        mx = f"v{V_MX+t}"
        if first:
            o += self.xreduce(V_MX + t, V_TMP + t, "v_max_f32")
            o.append((4, f"v_mov_b32 v{V_M+t}, {mx}"))
            o.append((4, f"v_sub_f32 v{V_NEGM+t}, 0, {mx}"))
            o.append((4, f"v_mov_b32 v{V_L+t}, 0"))
            if safe:
                o.append((4, f"v_add_f32 v{V_THR+t}, 0x{f32bits(THR_T):08x}, {mx}"))
                o.append((4, f"v_mov_b32 v{V_AL+t}, 1.0"))
            else:
                for e in range(4):
                    o.append((4, f"v_mov_b32 v{V_CI+t*4+e}, v{V_NEGM+t}"))
        else:
            lab = f"RARE_{site}_{t}"; ret = f"RET_{site}_{t}"
            o.append((4, f"v_cmp_gt_f32 vcc, {mx}, v{V_THR+t}"))
            o.append((4, f"s_cbranch_vccnz {lab}\n{ret}:"))
            self.rare.append((lab, t, ret))
        return o

    def sub(self, p, t, e):
        return (4, f"v_add_f32 v{self.S(p,t,e)}, v{self.S(p,t,e)}, v{V_NEGM+t}")
    def exp(self, p, t, e):
        return (8, f"v_exp_f32 v{self.S(p,t,e)}, v{self.S(p,t,e)}")
    def add(self, p, t, e):
        return (4, f"v_add_f32 v{V_L+t}, v{V_L+t}, v{self.S(p,t,e)}")
    def cvt(self, p, t, m):
        return (4, f"v_cvt_pk_bf16_f32 v{V_P+t*4+m}, v{self.S(p,t,2*m)}, v{self.S(p,t,2*m+1)}")

    @staticmethod
    def inter(x, y, ny=1, lag=0):
        o = []; y = list(y)
        for k, it in enumerate(x):
            o.append(it)
            if k >= lag:
                for _ in range(ny):
                    if y: o.append(y.pop(0))
        return o + y

    def order(self):
        return [(t, e) for t in range(4) for e in range(4)] + [(t, e) for t in range(4) for e in range(4, 8)]

    def QB(self, p, site, first, safe):
        NB = self.opt.get("NB", 19)
        od = self.order()
        if safe:
            o = []
            for t in range(4): o += self.q_max(p, t, site, first, safe)
            o += [self.sub(p, t, e) for t, e in od]
            o += [self.exp(p, t, e) for t, e in od[:8]]
            return o
        if first:
            o = []
            for t in range(4): o += self.q_max(p, t, site, first, safe)
            o += [self.sub(p, t, e) for t, e in od]
            o += self.inter([self.exp(p, t, e) for t, e in od[:NB]], [self.add(p, t, e) for t, e in od[:NB]], 1, 1)
            return o
        return self.inter([self.exp(p, t, e) for t, e in od[:NB]], [self.add(p, t, e) for t, e in od[:NB]], 1, 1)

    def QA(self, p, safe):
        NB = 8 if safe else self.opt.get("NB", 19)
        od = self.order()
        c0 = [self.cvt(p, t, m) for t in range(4) for m in range(2)]
        c1 = [self.cvt(p, t, m) for t in range(4) for m in range(2, 4)]
        if safe:
            return self.inter([self.exp(p, t, e) for t, e in od[8:]], [self.add(p, t, e) for t, e in od[:23]], 1, 1) + [self.add(p, t, e) for t, e in od[23:]] + c0 + c1
        ex = self.inter([self.exp(p, t, e) for t, e in od[NB:]], [self.add(p, t, e) for t, e in od[NB:]], 1, 1)
        return self.inter(ex, c0, 1, 0) + c1

    def k_read(self, n, ks, kc):
        kh, ds = divmod(ks, 6)
        self.a.ds(f"ds_read_b128 {ar(self.slot(n),4)}, v{V_KA+(ds&1)} offset:{kc + kh*6144 + (ds>>1)*128}", ("f", n))
    def v_read(self, n, dt, vc, i):
        self.a.ds(f"ds_read_b64_tr_b16 {ar(self.slot(n)+2*i,2)}, v{V_VA+(dt&3)} offset:{vc + PAGE + i*6144 + (dt>>2)*128}", ("f", n))

    def iteration(self, odd, site, safe=False, first=False, czero=False, last=False, j=None, vq=None):
        a = self.a
        self._it0 = len(a.lines)
        D = self.opt.get("D", 5)
        G = self.opt.get("G", 2)
        BUD = self.opt.get("BUD", 8)
        do_qk = not last; do_pv = not first
        cur = 1 if odd else 0; nxt = 1 - cur
        kc = 0 if odd else 24576
        kc_next = 24576 if odd else 0
        vc = 24576 if odd else 0
        base = self.fc
        nk = 12 if do_qk else 0
        nv = 12 if do_pv else 0
        nolook = last or (j == 30)
        def reads_for(step):
            n = base + step
            if step < nk: return [lambda: self.k_read(n, step, kc)]
            if step < nk + nv:
                return [lambda: self.v_read(n, step - nk, vc, 0), lambda: self.v_read(n, step - nk, vc, 1)]
            if nolook: return []
            return [lambda: self.k_read(n, step - nk - nv, kc_next)]
        qa = [] if first else self.QA(cur, safe)
        qb = [] if last else self.QB(nxt, site, first, safe)
        def dma_group(which):
            if which == "K":
                m0 = f"s_add_u32 m0, s{S_PA}, 24576" if odd else f"s_mov_b32 m0, s{S_PB}"
                srd, so = S_K, S_KOFF
            else:
                m0 = f"s_add_u32 m0, s{S_PC}, 36864" if odd else f"s_add_u32 m0, s{S_PA}, 12288"
                srd, so = S_V, S_VOFF
            tag = which if j is None else (which, j + (6 if which == "K" else 4))
            o = [(4, m0)]
            for i in range(3):
                o.append(self.VM(f"buffer_load_dwordx4 v{V_KD+i}, s[{srd}:{srd+3}], s{so} offen offset:{1024*i}{self.nt()} lds", tag))
            o.append((4, f"s_add_u32 s{so}, s{so}, {PAGE}"))
            return o
        if vq is None:
            vq = dma_group("K") + dma_group("V")
        else:
            vq = [x for w in vq for x in (dma_group(w) if isinstance(w, str) else w)]
        if self.opt.get("nodma"): vq = []
        pinA = {}; pinB = {}
        if not odd and not last:
            if not czero:
                pinA[0] = [(4, f"s_sub_u32 s{S_DV}, s{S_PB}, s{S_PA}")] + [(4, f"v_add_u32 v{V_VA+i}, s{S_DV}, v{V_VA+i}") for i in range(4)]
            pinB[0] = [(4, f"s_sub_u32 s{S_DK}, s{S_PC}, s{S_PB}")] + [(4, f"v_add_u32 v{V_KA+i}, s{S_DK}, v{V_KA+i}") for i in range(2)]
        BAR = 12 - D - 2
        VSP = self.opt.get("VSP", 6)
        st_ = {"vm": -9, "m": 0}
        CSL = self.opt.get("CSL", 0); CMAX = self.opt.get("CMAX", 4)
        def run_phase(steps, mk, queue, pins, qmin, off, vq):
            carry = 0
            for st in range(steps):
                gs = off + st
                if a.wait_lg(("f", base + min(gs + (G - 1 - (gs % G)), nk + nv - 1))): carry -= 4
                rd = reads_for(gs + D) if (do_pv or gs + D < nk) else []
                for t in range(4):
                    a.e(mk(st, t))
                    st_["m"] += 1
                    carry += BUD
                    if t % 2 == 0 and t // 2 < len(rd): rd[t // 2](); carry -= 4
                    if st in pins:
                        while pins[st] and (carry > 0 or t == 3):
                            cst, it = pins[st].pop(0); self.emit(it); carry -= cst
                    while vq and carry > 0:
                        cst, it = vq[0]
                        isvm = isinstance(it, tuple) and it[0] == "VM"
                        if isvm and st_["m"] - st_["vm"] < VSP: break
                        vq.pop(0); self.emit(it); carry -= cst
                        if isvm:
                            st_["vm"] = st_["m"]; break
                        if it.startswith("s_add_u32 m0") or it.startswith("s_mov_b32 m0"):
                            st_["vm"] = max(st_["vm"], st_["m"] - VSP + 1)
                            break
                    while queue and 4 * st + t >= qmin and carry >= queue[0][0] - CSL:
                        cst, it = queue.pop(0); self.emit(it); carry -= cst
                    if carry > CMAX: carry = CMAX
            self.emit_all(queue); queue.clear()
        def mk_qk(st, t):
            kh, ds = divmod(st, 6)
            acc = vr(self.S(nxt, t, 4 * kh), 4)
            c0 = "0" if (safe or first) else vr(V_CI + t * 4, 4)
            return f"v_mfma_f32_16x16x32_bf16 {acc}, {ar(self.slot(base+st),4)}, {vr(V_Q+t*24+ds*4,4)}, {c0 if ds == 0 else acc}"
        def mk_pv(st, t):
            acc = ar(self.oacc(st, t), 4)
            return f"v_mfma_f32_16x16x32_bf16 {acc}, {ar(self.slot(base+nk+st),4)}, {vr(V_P+t*4,4)}, {'0' if czero else acc}"
        a.c(f"---- iter site {site} phase A")
        if do_qk:
            run_phase(12, mk_qk, qa, pinA, 0, 0, vq)
        else:
            for st in range(D):
                for r in reads_for(st): r()
            k = 0
            for cst, it in qa:
                self.emit(it); k += 1
                if vq and k % 3 == 0:
                    self.emit(vq.pop(0)[1])
            a.e("s_nop 1")
        if not (last and not safe):
            for c_, it in vq:
                self.emit(it)
                if isinstance(it, str) and " m0," in it: a.e("s_nop 0")
            vq = []
        a.c(f"---- iter site {site} phase B")
        if do_pv:
            if not last:
                if j is None: bar = [(4, f"s_waitcnt vmcnt(18)"), (4, "s_barrier")]
                else: bar = [(4, ("WVM", [("K", j + 2), ("V", j + 1)])), (4, "s_barrier")]
                pinB.setdefault(BAR, []); pinB[BAR] = pinB[BAR] + bar
            elif not safe:
                pinB[0] = [(4, f"v_add_f32 v{V_TMP}, v{V_L}, v{V_L+1}"), (4, f"v_add_f32 v{V_TMP}, v{V_TMP}, v{V_L+2}"), (4, f"v_add_f32 v{V_TMP}, v{V_TMP}, v{V_L+3}"),
                           (4, f"v_cmp_nlt_f32 vcc, v{V_TMP}, v{V_THR}"),
                           (4, "s_cmp_lg_u64 vcc, 0"),
                           (4, f"s_cselect_b32 s{S_T0}, 1, 0"),
                           (4, f"v_mov_b32 v{V_TMP+7}, s{S_T0}"),
                           (4, ("DS", f"ds_write_b32 v{V_FL}, v{V_TMP+7}", "fl"))]
                pinB[5] = [(4, ("WLG", "fl")), (4, "s_barrier"), (4, f"v_mov_b32 v{V_TMP+6}, {PAGE}"),
                           (4, ("DS", f"ds_read_b128 v[{V_TMP+1}:{V_TMP+4}], v{V_TMP+6}", "fl"))]
            run_phase(12, mk_pv, qb, pinB, (8 if safe else self.opt.get("QMIN", 0)), nk, vq)
            self.emit_all(vq)
            if safe and not last:
                a.e(f"s_cmp_lg_u32 s{S_FLAG}, 0")
                a.e(f"s_mov_b32 s{S_SITE}, {site}")
                a.e(f"s_cbranch_scc1 RESCALE")
                a.label(f"RESC_RET_{site}")
        else:
            a.e("s_nop 7"); a.e("s_nop 3")
            a.wait_vm([("K", 1), ("V", 0)])
            a.e("s_barrier")
            for st in range(nk, nk + D):
                for r in reads_for(st): r()
            self.emit_all(qb)
        self.fc = base + nk + nv
        if self.opt.get("novalu") and not first:
            a.lines[self._it0:] = [l for l in a.lines[self._it0:] if not any(l.strip().startswith(x) for x in ("v_exp", "v_add_f32", "v_cvt"))]

    def stamp(self, i):
        if not self.opt.get("stamp"): return
        a = self.a
        a.e("s_memrealtime s[76:77]")
        a.e("s_memtime s[100:101]")
        a.e("s_waitcnt lgkmcnt(0)"); a.lg = []
        a.e(f"s_cmp_eq_u32 s{S_ROUND}, 0")
        a.e(f"s_cselect_b32 s{80+i}, s76, s{80+i}")
        a.e(f"s_cselect_b32 s{85+i}, s{85+i}, s76")
        a.e(f"s_cselect_b32 s{90+i}, s100, s{90+i}")
        a.e(f"s_cselect_b32 s{95+i}, s{95+i}, s100")

    def stamp_store(self):
        if not self.opt.get("stamp"): return
        a = self.a
        a.e(f"s_lshl_b32 s{S_T0}, s2, 9")
        a.e(f"s_lshl_b32 s{S_T1}, s{S_WAVE}, 7")
        a.e(f"s_add_u32 s{S_T0}, s{S_T0}, s{S_T1}")
        a.e(f"s_add_u32 s{S_T0}, s{S_T0}, {64<<20}")
        a.e("v_mov_b32 v1, 0")
        for i in range(20):
            a.e(f"v_mov_b32 v2, s{80+i}")
            a.e(f"buffer_store_dword v2, v1, s[{S_WS}:{S_WS+3}], s{S_T0} offen offset:{4*i}")
            a.e("s_waitcnt vmcnt(0)")

    def rotate(self):
        a = self.a
        a.e(f"s_mov_b32 s{S_T0}, s{S_PA}")
        a.e(f"s_mov_b32 s{S_PA}, s{S_PB}")
        a.e(f"s_mov_b32 s{S_PB}, s{S_PC}")
        a.e(f"s_mov_b32 s{S_PC}, s{S_T0}")

    def epilogue(self):
        a = self.a
        a.c("---- epilogue")
        for sw in ("v_permlane32_swap_b32", "v_permlane16_swap_b32"):
            for t in range(4): a.e(f"v_mov_b32 v{V_TMP+t}, v{V_L+t}")
            a.e("s_nop 0")
            for t in range(4): a.e(f"{sw} v{V_L+t}, v{V_TMP+t}")
            for t in range(4): a.e(f"v_add_f32 v{V_L+t}, v{V_L+t}, v{V_TMP+t}")
        for t in range(4): a.e(f"v_rcp_f32 v{V_L+t}, v{V_L+t}")
        a.e("s_nop 3")
        k = 0
        for t in range(4):
            for m6 in range(6):
                tb = V_S + (k % 4) * 16; k += 1
                for e in range(2):
                    for m in range(4):
                        a.e(f"v_accvgpr_read_b32 v{tb+4*e+m}, a{self.oacc(2*m6+e, t)+m}")
                for m in range(8):
                    a.e(f"v_mul_f32 v{tb+m}, v{tb+m}, v{V_L+t}")
                for m in range(4):
                    a.e(f"v_cvt_pk_bf16_f32 v{tb+8+m}, v{tb+2*m}, v{tb+2*m+1}")
                if m6 % 4 == 0:
                    a.e(f"s_add_u32 s{S_T2}, s{S_WSOFF}, {t*196608 + (m6>>2)*4096}")
                a.vmem(f"buffer_store_dwordx4 {vr(tb+8,4)}, v{V_L16}, s[{S_WS}:{S_WS+3}], s{S_T2} offen offset:{(m6&3)*1024}{' sc0 sc1' if self.mg else ''}", "ST")

    def rare_blocks(self, sites):
        a = self.a
        for lab, t, ret in self.rare:
            a.label(lab)
            mx = f"v{V_MX+t}"; tmp = f"v{V_TMP+t}"
            self.emit_all(self.xreduce(V_MX + t, V_TMP + t, "v_max_f32"))
            a.e(f"v_max_f32 {mx}, {mx}, v{V_M+t}")
            a.e(f"v_sub_f32 {tmp}, v{V_M+t}, {mx}")
            a.e(f"v_exp_f32 v{V_AL+t}, {tmp}")
            a.e(f"v_mov_b32 v{V_M+t}, {mx}")
            a.e(f"v_sub_f32 v{V_NEGM+t}, 0, {mx}")
            a.e(f"v_add_f32 v{V_THR+t}, 0x{f32bits(THR_T):08x}, {mx}")
            a.e(f"s_mov_b32 s{S_FLAG}, 1")
            a.e(f"s_branch {ret}")
        a.label("RESCALE")
        a.e("s_nop 15")
        for t in range(4):
            a.e(f"v_mul_f32 v{V_L+t}, v{V_L+t}, v{V_AL+t}")
            for d0 in range(0, 12, 2):
                regs = [self.oacc(d0 + e, t) + m for e in range(2) for m in range(4)]
                for m, r in enumerate(regs): a.e(f"v_accvgpr_read_b32 v{V_TMP+m}, a{r}")
                for m, r in enumerate(regs): a.e(f"v_mul_f32 v{V_TMP+m}, v{V_TMP+m}, v{V_AL+t}")
                for m, r in enumerate(regs): a.e(f"v_accvgpr_write_b32 a{r}, v{V_TMP+m}")
            a.e(f"v_mov_b32 v{V_AL+t}, 1.0")
        a.e(f"s_mov_b32 s{S_FLAG}, 0")
        a.e("s_nop 1")
        for s in sites[:-1]:
            a.e(f"s_cmp_eq_u32 s{S_SITE}, {s}")
            a.e(f"s_cbranch_scc1 RESC_RET_{s}")
        a.e(f"s_branch RESC_RET_{sites[-1]}")

    def dump_q(self):
        a = self.a
        for t in range(2):
            for ks in range(12):
                if ks % 4 == 0:
                    a.e(f"s_add_u32 s{S_T2}, s{S_WSOFF}, {t*393216 + (ks>>2)*4096}")
                a.vmem(f"buffer_store_dwordx4 {vr(V_Q+t*48+ks*4,4)}, v{V_L16}, s[{S_WS}:{S_WS+3}], s{S_T2} offen offset:{(ks&3)*1024}", "ST")

    def align_fc(self):
        while self.fc % RING: self.fc += 1

    def build(self, name):
        a = self.a
        D = self.opt.get("D", 5)
        a.raw(f".globl {name}\n.p2align 8\n.type {name},@function")
        a.label(name)
        i0 = len(a.lines)
        self.setup()
        a.label("K1_COLD")
        self.cold_loads()
        cold_vm = list(a.vm)
        a.label("K1_ITEM")
        self.stamp(0)
        self.item_setup()
        self.phase_q()
        self.stamp(1)
        for w, tl in ((("V", 1),) if self.opt.get("early", 1) else (("K", 2), ("K", 3), ("V", 1), ("K", 4), ("V", 2))):
            self.emit_all(self.g_kv_static(w, tl))
        self.align_fc()
        for st in range(D): self.k_read(self.fc + st, st, 0)
        self.q_convert()
        self.iteration(True, 9, first=True, j=-1)
        self.iteration(False, 0, czero=True, j=0)
        self.rotate()
        self.stamp(2)
        a.e(f"s_mov_b32 s{S_CNT}, 12")
        a.raw(".p2align 3")
        a.label("K1_LOOP")
        l0 = len(a.lines)
        self.iteration(True, 1)
        self.iteration(False, 2)
        self.rotate()
        a.e(f"s_sub_u32 s{S_CNT}, s{S_CNT}, 1")
        a.e(f"s_cmp_lg_u32 s{S_CNT}, 0")
        a.e("s_cbranch_scc1 K1_LOOP")
        l1 = len(a.lines)
        a.vm = []
        for jj in (22, 23, 24):
            a.vm += [("K", jj + 6)] * 3 + [("V", jj + 4)] * 3
        S4 = lambda ls: [(4, l) for l in ls]
        self.iteration(True, 3, j=25, vq=["K", "V", S4(self.srd_xw("next"))])
        self.iteration(False, 4, j=26, vq=["V", self.g_wq(0)])
        self.rotate()
        self.iteration(True, 5, j=27, vq=["V", self.g_wq(1)])
        self.iteration(False, 6, j=28, vq=[self.g_wq(2), S4(self.srd_kv("K", "next")), self.g_touch_x()])
        self.rotate()
        self.iteration(True, 7, j=29, vq=[self.g_wq(3), self.g_touch_w(), self.g_touch_o()])
        self.emit_all(self.g_signal())
        self.iteration(False, 8, j=30, vq=[self.g_x(0, 0), self.g_x(0, 1)])
        self.rotate()
        a.e(f"v_mov_b32 v{V_THR}, 0x{f32bits(LMAX):08x}")
        self.iteration(True, 10, j=31, last=True, vq=[self.g_x(1, 0), self.g_x(1, 1), self.g_kv_static("K", 0, tag=("K", 0))])
        a.wait_lg("fl")
        a.e(f"v_or3_b32 v{V_TMP}, v{V_TMP+1}, v{V_TMP+2}, v{V_TMP+3}")
        a.e(f"v_or_b32 v{V_TMP}, v{V_TMP}, v{V_TMP+4}")
        a.e("s_nop 0")
        a.e(f"v_readfirstlane_b32 s{S_T0}, v{V_TMP}")
        a.e("s_nop 3")
        if self.opt.get("force_safe"): a.e(f"s_mov_b32 s{S_T0}, 1")
        a.e(f"s_cmp_lg_u32 s{S_T0}, 0")
        a.e("s_cbranch_scc1 K1_SAFE")
        a.e("s_nop 3")
        self.stamp(3)
        self.addr_reset()
        a.vm = [t for t in a.vm if t[0] in ("W", "X", "T") or t == ("K", 0)]
        self.epilogue()
        assert a.vm == cold_vm[-len(a.vm):], (a.vm, cold_vm)
        self.stamp(4)
        self.paths["fast"] = a.lines[i0:l1] + a.lines[l0:]
        a.e(f"s_add_u32 s{S_ROUND}, s{S_ROUND}, 1")
        a.e(f"s_cmp_lt_u32 s{S_ROUND}, 2")
        a.e("s_cbranch_scc1 K1_ITEM")
        a.label("K1_FIN")
        if self.mg:
            self.stamp_store()
            a.e(f"s_add_u32 s3, s{S_IFL}, 16384")
            sv, sl = a.vm, a.lg
            a.vm = []; a.lg = []
            self.k2.build("x")
            a.vm = []; a.lg = []
        else:
            a.e("s_waitcnt vmcnt(0)")
            self.stamp_store()
            a.label("K1_END")
            a.e("s_endpgm")
        a.label("K1_SAFE")
        s0 = len(a.lines)
        a.e("s_waitcnt vmcnt(0) lgkmcnt(0)"); a.vm = []; a.lg = []
        a.e("s_barrier")
        self.addr_reset()
        for l in self.srd_kv("K", "cur") + self.srd_kv("V", "cur"): a.e(l)
        self.ring_init()
        for w, tl in (("K", 0), ("K", 1), ("K", 2), ("V", 0), ("K", 3), ("V", 1), ("K", 4), ("V", 2)):
            self.emit_all(self.g_kv_static(w, tl))
        a.wait_vm([("K", 0)])
        a.e("s_barrier")
        self.align_fc()
        for st in range(D): self.k_read(self.fc + st, st, 0)
        self.iteration(True, 19, safe=True, first=True, j=-1)
        self.iteration(False, 20, safe=True, czero=True, j=0)
        self.rotate()
        a.e(f"s_mov_b32 s{S_CNT}, 15")
        a.label("K1_SLOOP")
        sl0 = len(a.lines)
        self.iteration(True, 21, safe=True)
        self.iteration(False, 22, safe=True)
        self.rotate()
        a.e(f"s_sub_u32 s{S_CNT}, s{S_CNT}, 1")
        a.e(f"s_cmp_lg_u32 s{S_CNT}, 0")
        a.e("s_cbranch_scc1 K1_SLOOP")
        sl1 = len(a.lines)
        self.iteration(True, 23, safe=True, last=True, vq=[])
        a.e("s_nop 15")
        self.addr_reset()
        self.epilogue()
        a.e("s_waitcnt vmcnt(0) lgkmcnt(0)"); a.vm = []; a.lg = []
        a.e("s_barrier")
        self.paths["safe"] = a.lines[s0:sl1] + a.lines[sl0:]
        a.e(f"s_add_u32 s{S_ROUND}, s{S_ROUND}, 1")
        a.e(f"s_cmp_lt_u32 s{S_ROUND}, 2")
        a.e("s_cbranch_scc1 K1_COLD")
        a.e("s_branch K1_FIN")
        self.rare_blocks([20, 21, 22])

KD = """.amdhsa_kernel {name}
  .amdhsa_next_free_vgpr {vgpr}
  .amdhsa_next_free_sgpr {sgpr}
  .amdhsa_accum_offset {acc}
  .amdhsa_group_segment_fixed_size 0
  .amdhsa_kernarg_size 104
  .amdhsa_user_sgpr_count 2
  .amdhsa_user_sgpr_kernarg_segment_ptr 1
  .amdhsa_system_sgpr_workgroup_id_x 1
.end_amdhsa_kernel
"""
```

```python
from asmlib import *
import gen_k1

S_WO, S_WS, S_OUT, S_DBG = 8, 20, 24, 28
S_O = [12, 16, 72, 76+20]
S_WAVE, S_BLK, S_KQ, S_QB, S_NT, S_T0, S_T1, S_T2 = 54, 55, 56, 57, 58, 59, 60, 61
S_DOFF, S_OOFF, S_M0A, S_M0B, S_CNT, S_XW, S_XR, S_OUTOFF, S_CTR, S_SPIN = 62, 63, 64, 65, 66, 67, 68, 69, 70, 71
V_L16 = 8
V_WD = 10
V_WA = 16
V_OUT = 24
V_OF = 64
V_T = 104
A_ACC = 0
A_F = 160
RING = 10
UNIT = 20480
XBASE = 64 << 20
FBASE = 52 << 20
IBASE = 53 << 20
POL = ['', ' nt', ' sc0', ' sc1', ' sc0 sc1', ' sc0 nt', ' sc1 nt', ' sc0 sc1 nt']

class K2:
    def __init__(self, a, opt):
        self.a = a; self.opt = opt; self.paths = {}
        self.NU = opt.get('NU', 4); self.dq = []
        self.mg = opt.get('merged', 0); self.LB = 81920 if self.mg else 0
        self.OR = opt.get("OR", 4); self.NS = opt.get("NS", 4)
        self.launch = f"; @launch kernel=oproj_kernel grid=(256,1,1) block=(256,1,1) lds={self.NS*UNIT}"
        self.kd = gen_k1.KD.format(name="oproj_kernel", vgpr=512, sgpr=102, acc=256)

    def slot(self, n): return A_F + 4 * (n % RING)
    def oreg(self, ks, t): return V_OF + (ks % self.OR) * 16 + t * 4
    def acc(self, nt, qt): return A_ACC + (qt * 10 + nt) * 4

    def setup(self):
        a = self.a
        if not self.mg:
            a.e("s_cmp_ge_u32 s2, 256")
            a.e("s_cbranch_scc1 K2_END")
        a.e("s_load_dwordx2 s[32:33], s[0:1], 32")
        a.e("s_load_dwordx2 s[34:35], s[0:1], 72")
        a.e("s_load_dwordx4 s[36:39], s[0:1], 80")
        a.e("s_load_dwordx2 s[40:41], s[0:1], 96")
        a.e("v_and_b32 v1, 63, v0")
        a.e("v_lshrrev_b32 v2, 6, v0")
        a.e(f"v_lshlrev_b32 v{V_L16}, 4, v1")
        a.e(f"v_readfirstlane_b32 s{S_WAVE}, v2")
        if self.opt.get("xcc", 1) and not self.mg:
            a.e("s_waitcnt lgkmcnt(0)")
            claim_issue(a, 38, S_WAVE, S_DBG, S_CNT, S_SPIN, 30, 31)
        a.e(f"s_mul_i32 s{S_T0}, s{S_WAVE}, 320")
        for i in range(5):
            a.e(f"v_add_u32 v3, s{S_T0}, v1")
            if i: a.e(f"v_add_u32 v3, {64*i}, v3")
            a.e("v_mul_u32_u24 v4, 3277, v3")
            a.e("v_lshrrev_b32 v4, 16, v4")
            a.e("v_bfe_u32 v5, v4, 2, 1")
            a.e("v_lshlrev_b32 v5, 5, v5")
            a.e("v_lshlrev_b32 v6, 4, v3")
            a.e("v_mul_u32_u24 v7, 320, v4")
            a.e("v_sub_u32 v6, v6, v7")
            a.e("v_xor_b32 v6, v6, v5")
            a.e("v_mul_u32_u24 v5, 1280, v4")
            a.e("v_add_u32 v5, v5, v6")
            a.e(f"v_subrev_u32 v{V_WD+i}, {1024*i if i < 4 else 0}, v5")
        a.e("v_lshrrev_b32 v3, 4, v1")
        a.e("v_bfe_u32 v4, v1, 2, 2")
        a.e("v_lshl_add_u32 v4, v3, 2, v4")
        a.e("v_mul_u32_u24 v4, 320, v4")
        a.e("v_and_b32 v5, 3, v1")
        a.e("v_lshl_add_u32 v4, v5, 3, v4")
        a.e("v_and_b32 v5, 1, v3")
        for b in range(2):
            a.e(f"v_xor_b32 v6, {b}, v5")
            a.e("v_lshl_add_u32 v6, v6, 5, v4")
            for sl in range(self.NS):
                a.e(f"v_add_u32 v{V_WA+2*sl+b}, {sl*UNIT + self.LB}, v6")
        a.e("v_and_b32 v5, 15, v1")
        a.e("v_mul_u32_u24 v5, 2560, v5")
        a.e(f"v_lshl_add_u32 v{V_OUT}, v3, 3, v5")
        a.e("s_waitcnt lgkmcnt(0)")
        if self.opt.get("xcc", 1) and not self.mg:
            claim_finish(a, "K2", S_WAVE, 2, S_DBG, S_CNT, S_SPIN, 30, 31, 32, lds_off=81916)
        a.e(f"s_bfe_u32 s{S_BLK}, s2, 0x10002")
        a.e(f"s_and_b32 s{S_KQ}, s2, 3")
        a.e(f"s_lshr_b32 s{S_QB}, s2, 5")
        a.e(f"s_bfe_u32 s{S_NT}, s2, 0x20003")
        a.e(f"s_cmp_eq_u32 s{S_BLK}, 0")
        a.e(f"s_cselect_b32 s{S_WO}, s32, s34")
        a.e(f"s_cselect_b32 s{S_WO+1}, s33, s35")
        a.e(f"s_mul_i32 s{S_T0}, s{S_KQ}, {1536*1280}")
        a.e(f"s_add_u32 s{S_WO}, s{S_WO}, s{S_T0}")
        a.e(f"s_addc_u32 s{S_WO+1}, s{S_WO+1}, 0")
        a.e(f"s_mov_b32 s{S_WO+2}, {1536*1280}")
        a.e(f"s_mov_b32 s{S_WO+3}, 0x00020000")
        a.e(f"s_mul_i32 s{S_T0}, s{S_BLK}, 25165824")
        a.e(f"s_lshl_b32 s{S_T1}, s{S_QB}, 4")
        a.e(f"s_lshl_b32 s{S_T2}, s{S_WAVE}, 2")
        a.e(f"s_add_u32 s{S_T1}, s{S_T1}, s{S_T2}")
        a.e(f"s_mul_i32 s{S_T1}, s{S_T1}, 196608")
        a.e(f"s_add_u32 s{S_T0}, s{S_T0}, s{S_T1}")
        a.e(f"s_mul_i32 s{S_T1}, s{S_KQ}, 49152")
        a.e(f"s_add_u32 s{S_T0}, s{S_T0}, s{S_T1}")
        for qt in range(4):
            if qt: a.e(f"s_add_u32 s{S_T0}, s{S_T0}, 196608")
            a.e(f"s_add_u32 s{S_O[qt]}, s40, s{S_T0}")
            a.e(f"s_addc_u32 s{S_O[qt]+1}, s41, 0")
            a.e(f"s_mov_b32 s{S_O[qt]+2}, 49152")
            a.e(f"s_mov_b32 s{S_O[qt]+3}, 0x00020000")
        a.e(f"s_mov_b32 s{S_WS}, s40"); a.e(f"s_mov_b32 s{S_WS+1}, s41")
        a.e(f"s_mov_b32 s{S_WS+2}, 439353344"); a.e(f"s_mov_b32 s{S_WS+3}, 0x00020000")
        a.e(f"s_mov_b32 s{S_OUT}, s36"); a.e(f"s_mov_b32 s{S_OUT+1}, s37")
        a.e(f"s_mov_b32 s{S_OUT+2}, {8*256*1280*2}"); a.e(f"s_mov_b32 s{S_OUT+3}, 0x00020000")
        a.e(f"s_mov_b32 s{S_DBG}, s38"); a.e(f"s_mov_b32 s{S_DBG+1}, s39")
        a.e(f"s_mov_b32 s{S_DBG+2}, 256"); a.e(f"s_mov_b32 s{S_DBG+3}, 0x00020000")
        a.e(f"s_mul_i32 s{S_DOFF}, s{S_NT}, 320")
        a.e(f"s_mov_b32 s{S_OOFF}, 0")
        a.e(f"s_mul_i32 s{S_M0A}, s{S_WAVE}, 5120")
        if self.opt.get("rot"):
            a.e(f"s_mul_i32 s{S_T0}, s{S_NT}, {self.opt.get('rn', 2)}")
            a.e(f"s_mul_i32 s{S_T1}, s{S_QB}, {self.opt.get('rq', 1)}")
            a.e(f"s_add_u32 s{S_T0}, s{S_T0}, s{S_T1}")
            a.e(f"s_lshl_b32 s{S_OOFF}, s{S_T0}, 12")
            a.e(f"s_mul_i32 s{S_T0}, s{S_T0}, 81920")
            a.e(f"s_add_u32 s{S_M0B}, s{S_DOFF}, s{S_T0}")
        a.e(f"s_lshl_b32 s{S_T0}, s{S_BLK}, 5")
        a.e(f"s_lshr_b32 s{S_T1}, s2, 3")
        a.e(f"s_add_u32 s{S_T0}, s{S_T0}, s{S_T1}")
        a.e(f"s_lshl_b32 s{S_CTR}, s{S_T0}, 8")
        a.e(f"s_lshl_b32 s{S_T1}, s{S_WAVE}, 2")
        a.e(f"s_add_u32 s{S_CTR}, s{S_CTR}, s{S_T1}")
        a.e(f"s_add_u32 s{S_CTR}, s{S_CTR}, {FBASE}")
        a.e(f"s_mul_i32 s{S_T0}, s{S_T0}, {16*20480}")
        a.e(f"s_mul_i32 s{S_T1}, s{S_WAVE}, 5120")
        a.e(f"s_add_u32 s{S_T0}, s{S_T0}, s{S_T1}")
        a.e(f"s_add_u32 s{S_XW}, s{S_T0}, {XBASE}")
        a.e(f"s_lshl_b32 s{S_T0}, s{S_QB}, 2")
        a.e(f"s_add_u32 s{S_T0}, s{S_T0}, s{S_WAVE}")
        a.e(f"s_mul_i32 s{S_OUTOFF}, s{S_T0}, {64*2560}")
        a.e(f"s_mul_i32 s{S_T0}, s{S_BLK}, 1280")
        a.e(f"s_add_u32 s{S_OUTOFF}, s{S_OUTOFF}, s{S_T0}")
        a.e(f"s_add_u32 s{S_OUTOFF}, s{S_OUTOFF}, s{S_DOFF}")
        a.e(f"s_mul_i32 s{S_T0}, s{S_KQ}, {16*2560}")
        a.e(f"s_add_u32 s{S_OUTOFF}, s{S_OUTOFF}, s{S_T0}")
        if self.opt.get("rot"):
            a.e(f"s_mov_b32 s{S_DOFF}, s{S_M0B}")

    def stamp(self, i):
        if not self.opt.get("stamp2"): return
        a = self.a
        a.e("s_memrealtime s[76:77]" if self.opt.get("stamp2") == 1 else "s_memtime s[76:77]")
        a.e("s_waitcnt lgkmcnt(0)"); a.lg = []
        a.e(f"s_mov_b32 s{80+i}, s76")

    def stamp_store(self):
        if not self.opt.get("stamp2"): return
        a = self.a
        a.e(f"s_lshl_b32 s{S_T0}, s2, 8")
        a.e(f"s_lshl_b32 s{S_T1}, s{S_WAVE}, 6")
        a.e(f"s_add_u32 s{S_T0}, s{S_T0}, s{S_T1}")
        a.e(f"s_add_u32 s{S_T0}, s{S_T0}, {60<<20}")
        a.e("v_mov_b32 v1, 0")
        for i in range(16):
            a.e(f"v_mov_b32 v2, s{80+i}")
            a.e(f"buffer_store_dword v2, v1, s[{S_WS}:{S_WS+3}], s{S_T0} offen offset:{4*i}")
            a.e("s_waitcnt vmcnt(0)")

    def dma_items(self, u):
        sl = (u % self.NS) * UNIT + self.LB
        nt = POL[self.opt.get('ntw', 0)]
        o = [f"s_add_u32 m0, s{S_M0A}, {sl}", "s_nop 0"]
        for i in range(4):
            o.append(("VM", f"buffer_load_dwordx4 v{V_WD+i}, s[{S_WO}:{S_WO+3}], s{S_DOFF} offen offset:{1024*i}{nt} lds", ("W", u % self.NS)))
        o += [f"s_add_u32 m0, s{S_M0A}, {sl + 4096}", "s_nop 0"]
        o.append(("VM", f"buffer_load_dwordx4 v{V_WD+4}, s[{S_WO}:{S_WO+3}], s{S_DOFF} offen{nt} lds", ("W", u % self.NS)))
        o.append(f"s_add_u32 s{S_DOFF}, s{S_DOFF}, {64*1280}")
        return o

    def emit(self, it):
        if isinstance(it, tuple): self.a.vmem(it[1], it[2])
        else: self.a.e(it)

    def dma(self, u):
        for it in self.dma_items(u): self.emit(it)

    def oadv(self):
        self.a.e(f"s_add_u32 s{S_OOFF}, s{S_OOFF}, 4096")

    def oload(self, ks, t):
        srd = S_O[t]
        self.a.vmem(f"buffer_load_dwordx4 {vr(self.oreg(ks,t),4)}, v{V_L16}, s[{srd}:{srd+3}], s{S_OOFF} offen offset:{(ks&3)*1024}{POL[self.opt.get('nto', 4 if self.mg else 0)]}", ("O", ks % self.OR, t))

    def wread(self, g, i):
        u, r = divmod(g, 20); s, nt = divmod(r, 10)
        self.a.ds(f"ds_read_b64_tr_b16 {ar(self.slot(g)+2*i,2)}, v{V_WA+2*(u%self.NS)+(nt&1)} offset:{s*10240 + i*5120 + (nt>>1)*64}", ("wf", g % (20*self.NU)))

    def body(self, first=False):
        a = self.a
        D = self.opt.get("D2", 5)
        G = self.opt.get("G2", 2)
        NT = 20 * self.NU
        for g in range(NT):
            u, r = divmod(g, 20); s, nt = divmod(r, 10)
            ks = 2 * u + s
            if nt == 0:
                a.wait_vm([("O", ks % self.OR, t) for t in range(4)])
            a.wait_lg(("wf", (g + (G - 1 - g % G)) % NT))
            for t in range(4):
                acc = ar(self.acc(nt, t), 4)
                cin = "0" if (first and ks == 0) else acc
                a.e(f"v_mfma_f32_16x16x32_bf16 {acc}, {ar(self.slot(g),4)}, {vr(self.oreg(ks,t),4)}, {cin}")
                if t % 2 == 0: self.wread(g + D, t // 2)
                if t == 1 and nt in (1, 3, 5, 7):
                    kn = ks - 1 + self.OR
                    if nt == 1 and (kn & 3) == 0: self.oadv()
                    self.oload(kn, nt >> 1)
                elif t == 1:
                    while self.dq:
                        it = self.dq.pop(0); self.emit(it)
                        if isinstance(it, tuple): break
            if r == 20 - D - 1:
                assert not [x for x in self.dq if isinstance(x, tuple)]
                for it in self.dq: self.emit(it)
                a.wait_vm([("W", (u + 1) % self.NS)])
                a.e("s_barrier")
                self.dq = self.dma_items(u + self.NS - 1)

    def build(self, name):
        a = self.a
        D = self.opt.get("D2", 5)
        if not self.mg:
            a.raw(f".globl {name}\n.p2align 8\n.type {name},@function")
            a.label(name)
        i0 = len(a.lines)
        self.setup()
        self.stamp(0)
        assert self.OR == 4
        if self.mg:
            a.e("s_waitcnt vmcnt(24)")
            a.e("s_barrier")
            a.vm = ["ST"] * 24
            for u in range(self.NS - 1): self.dma(u)
            a.wait_vm(["ST"])
            a.e("s_barrier")
            a.e(f"s_cmp_lg_u32 s{S_WAVE}, 0")
            a.e("s_cbranch_scc1 K2_READY")
            a.e("v_mov_b32 v2, 1")
            a.e("v_mov_b32 v3, 0")
            a.e("s_mov_b64 exec, 1")
            a.e(f"buffer_store_dword v2, v3, s[{S_WS}:{S_WS+3}], s3 offen sc0 sc1")
            a.e("s_mov_b64 exec, 0xff")
            a.e("v_lshlrev_b32 v4, 6, v1")
            a.e(f"s_lshl_b32 s{S_T0}, s{S_BLK}, 8"); a.e(f"s_lshl_b32 s{S_T1}, s{S_QB}, 5"); a.e(f"s_add_u32 s{S_T0}, s{S_T0}, s{S_T1}")
            a.e(f"s_lshl_b32 s{S_T1}, s{S_KQ}, 3"); a.e(f"s_add_u32 s{S_T0}, s{S_T0}, s{S_T1}")
            a.e(f"s_lshl_b32 s{S_T0}, s{S_T0}, 6"); a.e(f"s_add_u32 s{S_T0}, s{S_T0}, {IBASE}")
            a.e(f"s_mov_b32 s{S_SPIN}, 0")
            a.label("K2_WAIT")
            a.e(f"buffer_load_dword v5, v4, s[{S_WS}:{S_WS+3}], s{S_T0} offen sc0 sc1")
            a.e(f"buffer_load_dword v6, v3, s[{S_DBG}:{S_DBG+3}], 0 offen offset:16 sc0 sc1")
            a.e("s_waitcnt vmcnt(0)")
            a.e("v_xor_b32 v6, 0x100, v6")
            a.e("v_xor_b32 v5, 1, v5")
            a.e("v_or_b32 v5, v5, v6")
            a.e("v_cmp_ne_u32 vcc, 0, v5")
            a.e(f"s_add_u32 s{S_SPIN}, s{S_SPIN}, 1")
            a.e("s_cbranch_vccz K2_GO")
            a.e("s_sleep 2")
            a.e(f"s_cmp_lt_u32 s{S_SPIN}, 2000000")
            a.e("s_cbranch_scc1 K2_WAIT")
            a.label("K2_GO")
            a.e("s_mov_b64 exec, -1")
            a.label("K2_READY")
            a.e("s_barrier")
            for u in range(self.NS - 1):
                for t in range(4): self.oload(u, t)
        else:
            for u in range(self.NS - 1):
                self.dma(u)
                for t in range(4): self.oload(u, t)
        a.wait_vm([("W", 0)])
        a.e("s_barrier")
        self.stamp(1)
        for g in range(D):
            self.wread(g, 0); self.wread(g, 1)
        self.body(first=True)
        a.e(f"s_mov_b32 s{S_CNT}, {24 // self.NU - 1}")
        a.raw(".p2align 3")
        a.label("K2_LOOP")
        l0 = len(a.lines)
        self.body()
        t1 = a.lines[l0:]
        import copy
        b = Asm(); b.lg = list(a.lg); b.vm = list(a.vm)
        sa = self.a; self.a = b; dq = list(self.dq); self.body(); self.a = sa; self.dq = dq
        assert b.lines == t1, "K2 loop not steady"
        a.e(f"s_sub_u32 s{S_CNT}, s{S_CNT}, 1")
        a.e(f"s_cmp_lg_u32 s{S_CNT}, 0")
        a.e("s_cbranch_scc1 K2_LOOP")
        l1 = len(a.lines)
        if self.opt.get("k2nocomp"):
            a.lines[i0:] = [l for l in a.lines[i0:] if not (l.strip().startswith("v_mfma") or l.strip().startswith("ds_read"))]
        if self.opt.get("k2noo"):
            a.lines[i0:] = [l for l in a.lines[i0:] if not (l.strip().startswith("buffer_load") and " lds" not in l)]
        if self.opt.get("k2now"):
            a.lines[i0:] = [l for l in a.lines[i0:] if not (l.strip().startswith("buffer_load") and " lds" in l)]
        l1 = len(a.lines); l0 = a.lines.index("K2_LOOP:") + 1
        a.e("s_waitcnt vmcnt(0) lgkmcnt(0)"); a.vm = []; a.lg = []
        a.e("s_nop 15")
        self.stamp(2)
        a.e("v_mov_b32 v1, 0")
        a.e("v_mov_b32 v2, 1")
        for kq in range(4):
            if kq < 3:
                a.e(f"s_cmp_lg_u32 s{S_KQ}, {kq}")
                a.e(f"s_cbranch_scc1 K2_X{kq+1}")
            for d in range(1, 4):
                g = (kq + d) & 3
                tb = V_T + 40 + (d - 1) * 20
                for tl in range(10):
                    for m in range(4):
                        a.e(f"v_accvgpr_read_b32 v{4+m}, a{self.acc(tl, g)+m}")
                    a.e(f"v_cvt_pk_bf16_f32 v{tb+2*tl}, v4, v5")
                    a.e(f"v_cvt_pk_bf16_f32 v{tb+2*tl+1}, v6, v7")
                    if tl % 2 == 1:
                        k = tl // 2
                        if k in (0, 4): a.e(f"s_add_u32 s{S_T0}, s{S_XW}, {(g*4+kq)*20480 + (4096 if k == 4 else 0)}")
                        a.e(f"buffer_store_dwordx4 {vr(tb+4*k,4)}, v{V_L16}, s[{S_WS}:{S_WS+3}], s{S_T0} offen offset:{(k&3)*1024} sc0 sc1")
            for tl in range(10):
                for m in range(4):
                    a.e(f"v_accvgpr_read_b32 v{V_T+tl*4+m}, a{self.acc(tl, kq)+m}")
            a.e("s_mov_b64 exec, 1")
            for d in range(1, 4):
                g = (kq + d) & 3
                a.e(f"s_waitcnt vmcnt({10 - 5*(d-1) + (d-1)})")
                a.e(f"buffer_store_dword v2, v1, s[{S_WS}:{S_WS+3}], s{S_CTR} offen offset:{(g*4+kq)*16} sc0 sc1")
            a.e("s_mov_b64 exec, -1")
            self.stamp(3)
            for d in range(1, 4):
                src = (kq - d) & 3
                a.e(f"s_mov_b32 s{S_SPIN}, 0")
                a.label(f"K2_POLL{kq}_{d}")
                a.e(f"buffer_load_dword v3, v1, s[{S_WS}:{S_WS+3}], s{S_CTR} offen offset:{(kq*4+src)*16} sc0 sc1")
                a.e("s_waitcnt vmcnt(0)")
                a.e("v_readfirstlane_b32 s46, v3")
                a.e(f"s_add_u32 s{S_SPIN}, s{S_SPIN}, 1")
                a.e("s_cmp_eq_u32 s46, 1")
                a.e(f"s_cbranch_scc1 K2_GOT{kq}_{d}")
                a.e(f"s_cmp_lt_u32 s{S_SPIN}, 2000000")
                a.e(f"s_cbranch_scc1 K2_POLL{kq}_{d}")
                a.label(f"K2_GOT{kq}_{d}")
                tb = V_OF + (d - 1) * 20 if d < 3 else V_T + 100
                for k in range(5):
                    if k in (0, 4): a.e(f"s_add_u32 s{S_T0}, s{S_XW}, {(kq*4+src)*20480 + (4096 if k == 4 else 0)}")
                    a.e(f"buffer_load_dwordx4 {vr(tb+4*k,4)}, v{V_L16}, s[{S_WS}:{S_WS+3}], s{S_T0} offen offset:{(k&3)*1024} sc0 sc1")
            if kq < 3:
                a.e("s_branch K2_SUM")
                a.label(f"K2_X{kq+1}")
        a.label("K2_SUM")
        self.stamp(4)
        a.e("s_mov_b32 s46, 0xffff0000")
        for d in range(1, 4):
            if d == 3: a.e("s_waitcnt vmcnt(0)")
            tb = V_OF + (d - 1) * 20 if d < 3 else V_T + 100
            for r in range(20):
                a.e(f"v_lshlrev_b32 v4, 16, v{tb+r}")
                a.e(f"v_and_b32 v5, s46, v{tb+r}")
                a.e(f"v_add_f32 v{V_T+2*r}, v{V_T+2*r}, v4")
                a.e(f"v_add_f32 v{V_T+2*r+1}, v{V_T+2*r+1}, v5")
        for tl in range(10):
            a.e(f"v_cvt_pk_bf16_f32 v{V_T+tl*4}, v{V_T+tl*4}, v{V_T+tl*4+1}")
            a.e(f"v_cvt_pk_bf16_f32 v{V_T+tl*4+1}, v{V_T+tl*4+2}, v{V_T+tl*4+3}")
            a.e(f"buffer_store_dwordx2 {vr(V_T+tl*4,2)}, v{V_OUT}, s[{S_OUT}:{S_OUT+3}], s{S_OUTOFF} offen offset:{tl*32}")
        if self.opt.get("stamp2"):
            a.e("s_waitcnt vmcnt(0)")
        self.stamp(5)
        self.stamp_store()
        a.label("K2_END")
        a.e("s_endpgm")
        self.paths["k2"] = a.lines[i0:l1] + a.lines[l0:]
```
